```python
import torch

def _softmax(x, axis=-1):
    return torch.softmax(x, dim=axis)

def _gelu(x):
    return torch.nn.functional.gelu(x, approximate='tanh')

def _silu(x):
    return torch.nn.functional.silu(x)

def _sigmoid(x):
    return torch.sigmoid(x)

def _layernorm(x, axis=-1, eps=1e-05):
    m = x.mean(dim=axis, keepdim=True)
    v = x.var(dim=axis, keepdim=True, unbiased=False)
    return (x - m) / torch.sqrt(v + eps)

def _scatter_add(tgt, idx, src, axis=0):
    return tgt.clone().index_add_(axis, idx, src)

def _segment_sum(src, seg, n):
    out = torch.zeros((n,) + src.shape[1:], dtype=src.dtype)
    return out.index_add_(0, seg, src)

def _pad(x, pw):
    flat = tuple((v for pair in reversed(pw) for v in pair))
    return torch.nn.functional.pad(x, flat)
kernel_name = 'standalone__conformer_conv_module__speech'

def setup_inputs():

    _w = lambda a: (lambda t: t.to(torch.bfloat16) if t.is_floating_point() else t)(torch.as_tensor(a))
    B, T, D, K = (2, 16000, 512, 5)
    return {'x': _w((lambda *s: torch.randn(*s, dtype=torch.bfloat16) * 0.2)(B, T, D)), 'w_pw1': _w((lambda *s: torch.randn(*s, dtype=torch.bfloat16) * 0.2)(D, 2 * D)), 'dw': _w((lambda *s: torch.randn(*s, dtype=torch.bfloat16) * 0.2)(K, D)), 'w_pw2': _w((lambda *s: torch.randn(*s, dtype=torch.bfloat16) * 0.05)(D, D))}

def reference(x, w_pw1, dw, w_pw2):
    B, T, D = x.shape
    K = dw.shape[0]
    h = x @ w_pw1
    a, b = (h[..., :D].clone(), h[..., D:].clone())
    h = a * _sigmoid(b)
    pad = K // 2
    hp = _pad(h, ((0, 0), (pad, pad), (0, 0)))
    out = torch.zeros_like(h)
    for i in range(K):
        out = out + hp[:, i:i + T, :] * dw[i][None, None, :]
    return _silu(out) @ w_pw2
```

```python
import sys
HDR = """; @launch grid=({grid},1,1) block=(512,1,1) lds={lds}
.amdgcn_target "amdgcn-amd-amdhsa--gfx950"
.text
.globl {name}
.p2align 8
.type {name},@function
{name}:
    s_memrealtime s[40:41]
    s_memtime s[42:43]
    s_load_dwordx4 s[4:7], s[0:1], 0      ; x, w1
    s_load_dwordx4 s[24:27], s[0:1], 16    ; dw, w2
    s_load_dwordx2 s[28:29], s[0:1], 32    ; out
    s_load_dwordx2 s[30:31], s[0:1], 48    ; ws
    v_lshrrev_b32 v1, 6, v0
    s_nop 1
    v_readfirstlane_b32 s20, v1
    s_waitcnt lgkmcnt(0)
    s_mov_b32 s8, s30
    s_mov_b32 s9, s31
    s_mov_b32 s10, 0x100000
    s_mov_b32 s11, 0x20000
    s_mov_b32 s12, s4
    s_mov_b32 s13, s5
    s_mov_b32 s14, 32768000
    s_mov_b32 s15, 0x20000
    s_mov_b32 s16, s6
    s_mov_b32 s17, s7
    s_mov_b32 s18, 1048576
    s_mov_b32 s19, 0x20000
    s_mov_b32 s32, s28
    s_mov_b32 s33, s29
    s_mov_b32 s34, 32768000
    s_mov_b32 s35, 0x20000
    v_and_b32 v2, 63, v0
"""
TAIL = """
    s_waitcnt vmcnt(0) lgkmcnt(0)
    s_memrealtime s[44:45]
    s_memtime s[46:47]
    s_waitcnt lgkmcnt(0)
    s_sub_u32 s46, s46, s42
    v_mov_b32 v8, s40
    v_mov_b32 v9, s44
    v_mov_b32 v10, s46
    v_mov_b32 v11, s48
    s_lshl_b32 s26, s2, 3
    s_add_u32 s26, s26, s20
    s_lshl_b32 s26, s26, 4
    v_mov_b32 v6, s26
    buffer_store_dwordx4 v[8:11], v6, s[8:11], 0 offen
    s_waitcnt vmcnt(0)
    s_endpgm
.section .rodata,"a"
.p2align 6
.amdhsa_kernel {name}
  .amdhsa_next_free_vgpr 256
  .amdhsa_next_free_sgpr 102
  .amdhsa_accum_offset 256
  .amdhsa_group_segment_fixed_size 0
  .amdhsa_kernarg_size 56
  .amdhsa_user_sgpr_count 2
  .amdhsa_user_sgpr_kernarg_segment_ptr 1
  .amdhsa_system_sgpr_workgroup_id_x 1
.end_amdhsa_kernel
"""
files = []
def emit(tag, body, grid=250, lds=163840):
    n = f"mb_{tag}_kernel"
    open(f"mb/{tag}.s", "w").write(HDR.format(grid=grid, lds=lds, name=n) + body + TAIL.format(name=n))
    files.append(f"mb/{tag}.s")

emit("empty", "    s_mov_b32 s48, 0\n")

def xload(flags=""):
    o = ["    s_mov_b32 s48, 0"]
    o.append("    v_lshrrev_b32 v3, 3, v2")
    o.append("    v_and_b32 v4, 7, v2")
    o.append("    v_lshlrev_b32 v3, 10, v3")
    o.append("    v_lshl_add_u32 v3, v4, 4, v3")
    o.append("    s_lshl_b32 s21, s2, 17")
    o.append("    s_lshl_b32 s22, s20, 14")
    o.append("    s_add_u32 s21, s21, s22")
    for kc in range(8):
        for half in range(2):
            o.append(f"    s_add_u32 s23, s21, {kc*128 + half*8192}")
            o.append(f"    s_add_u32 s36, s22, {(kc*2+half)*1024}")
            o.append(f"    s_mov_b32 m0, s36")
            o.append(f"    s_nop 0")
            o.append(f"    buffer_load_dwordx4 v3, s[12:15], s23 offen {flags} lds")
    o.append("    s_waitcnt vmcnt(14)")
    o.append("    s_memrealtime s[48:49]")
    return "\n".join(o) + "\n"
emit("xload", xload())
emit("xload_nt", xload("nt"))

def wstream(depth, warm, passes=1, nk=32*2):
    o = ["    s_mov_b32 s48, 0"]
    if warm:
        o.append("    s_lshr_b32 s21, s2, 3")
        o.append("    s_lshl_b32 s21, s21, 15")
        o.append("    s_lshl_b32 s22, s20, 12")
        o.append("    s_add_u32 s21, s21, s22")
        o.append("    v_lshlrev_b32 v3, 6, v2")
        o.append("    buffer_load_dword v20, v3, s[16:19], s21 offen")
    o.append("    v_lshrrev_b32 v3, 3, v2")
    o.append("    v_and_b32 v4, 7, v2")
    o.append("    v_lshlrev_b32 v3, 11, v3")
    o.append("    v_lshl_add_u32 v3, v4, 4, v3")
    o.append("    s_lshl_b32 s22, s20, 7")
    o.append("    s_lshl_b32 s37, s20, 14")
    o.append(f"    s_mov_b32 s38, 0")
    o.append(f"    s_mov_b32 s39, {passes*64}")
    o.append("L_loop:")
    o.append("    s_and_b32 s23, s38, 63")
    o.append("    s_lshl_b32 s23, s23, 14")
    o.append("    s_lshr_b32 s36, s38, 6")
    o.append("    s_and_b32 s36, s36, 1")
    o.append("    s_lshl_b32 s36, s36, 10")
    o.append("    s_add_u32 s23, s23, s36")
    o.append("    s_add_u32 s23, s23, s22")
    o.append("    s_and_b32 s36, s38, 15")
    o.append("    s_lshl_b32 s36, s36, 10")
    o.append("    s_add_u32 s36, s36, s37")
    o.append("    s_mov_b32 m0, s36")
    o.append("    s_nop 0")
    o.append("    buffer_load_dwordx4 v3, s[16:19], s23 offen lds")
    o.append(f"    s_waitcnt vmcnt({depth-1})")
    o.append("    s_add_u32 s38, s38, 1")
    o.append("    s_cmp_lt_u32 s38, s39")
    o.append("    s_cbranch_scc1 L_loop")
    return "\n".join(o) + "\n"
for d in [2,3,4,6,8,16]:
    emit(f"w_d{d}", wstream(d, False, passes=3))
    emit(f"w_d{d}_warm", wstream(d, True, passes=3))

def store(flags, mode):
    o = ["    s_mov_b32 s48, 0"]
    o.append("    s_lshl_b32 s21, s2, 17")
    if mode == "full":
        o.append("    v_lshrrev_b32 v3, 3, v2")
        o.append("    v_and_b32 v4, 7, v2")
        o.append("    v_lshlrev_b32 v3, 10, v3")
        o.append("    v_lshl_add_u32 v3, v4, 4, v3")
        o.append("    s_lshl_b32 s22, s20, 7")
        o.append("    s_add_u32 s21, s21, s22")
        for j in range(16):
            o.append(f"    s_add_u32 s23, s21, {j*8192}")
            o.append(f"    buffer_store_dwordx4 v[12:15], v3, s[32:35], s23 offen {flags}")
    elif mode == "seg32":
        o.append("    v_and_b32 v3, 31, v2")
        o.append("    v_lshrrev_b32 v4, 5, v2")
        o.append("    v_lshlrev_b32 v3, 10, v3")
        o.append("    v_lshl_add_u32 v3, v4, 4, v3")
        o.append("    s_lshl_b32 s22, s20, 7")
        o.append("    s_add_u32 s21, s21, s22")
        for rb in range(4):
            for j in range(4):
                o.append(f"    s_add_u32 s23, s21, {rb*32768 + j*32}")
                o.append(f"    buffer_store_dwordx4 v[12:15], v3, s[32:35], s23 offen {flags}")
    elif mode == "seg16":
        o.append("    v_and_b32 v3, 31, v2")
        o.append("    v_lshrrev_b32 v4, 5, v2")
        o.append("    v_lshlrev_b32 v3, 10, v3")
        o.append("    v_lshl_add_u32 v3, v4, 6, v3")
        o.append("    s_lshl_b32 s22, s20, 7")
        o.append("    s_add_u32 s21, s21, s22")
        for rb in range(4):
            for j in range(4):
                o.append(f"    s_add_u32 s23, s21, {rb*32768 + j*16}")
                o.append(f"    buffer_store_dwordx4 v[12:15], v3, s[32:35], s23 offen {flags}")
    o.append("    s_memrealtime s[48:49]")
    return "\n".join(o) + "\n"
for mode in ["full", "seg32", "seg16"]:
    for fl, tg in [("", "plain"), ("sc1", "sc1"), ("sc0 sc1", "sc01"), ("nt", "nt"), ("sc1 nt", "sc1nt")]:
        emit(f"st_{mode}_{tg}", store(fl, mode))
print(" ".join(files))
```

```python
import sys, io, contextlib
with contextlib.redirect_stdout(io.StringIO()):
    from gen_mem import *
files.clear()
def body(depth, nst, flags, seg, pace=0):
    o = ["    s_mov_b32 s48, 0"]
    o.append("    s_lshr_b32 s21, s2, 3")
    o.append("    s_lshl_b32 s21, s21, 15")
    o.append("    s_lshl_b32 s22, s20, 12")
    o.append("    s_add_u32 s21, s21, s22")
    o.append("    v_lshlrev_b32 v3, 6, v2")
    o.append("    buffer_load_dword v20, v3, s[16:19], s21 offen")
    o.append("    s_cmp_lt_u32 s20, 4")
    o.append("    s_cbranch_scc1 L_w")
    o.append("""
    s_add_u32 s50, s40, 300
L_spin:
    s_memrealtime s[52:53]
    s_waitcnt lgkmcnt(0)
    s_sub_u32 s54, s52, s50
    s_cmp_lt_i32 s54, 0
    s_cbranch_scc1 L_spin
""")
    if seg == 128:
        o.append("    v_lshrrev_b32 v3, 3, v2")
        o.append("    v_and_b32 v4, 7, v2")
        o.append("    v_lshlrev_b32 v3, 10, v3")
        o.append("    v_lshl_add_u32 v3, v4, 4, v3")
        offs = [ (j%16)*8192 + (j//16)*512 for j in range(nst)]
    else:
        o.append("    v_and_b32 v3, 15, v2")
        o.append("    v_lshrrev_b32 v4, 4, v2")
        o.append("    v_lshlrev_b32 v3, 10, v3")
        o.append("    v_lshl_add_u32 v3, v4, 4, v3")
        offs = [ ((j%16)//2)*16384 + (j%2)*64 + (j//16)*512 for j in range(nst)]
    o.append("    s_lshl_b32 s21, s2, 17")
    o.append("    s_sub_u32 s22, s20, 4")
    o.append("    s_lshl_b32 s22, s22, 7")
    o.append("    s_add_u32 s21, s21, s22")
    o.append(f"    s_memrealtime s[60:61]")
    for off in offs:
        o.append(f"    s_add_u32 s23, s21, {off}")
        o.append(f"    buffer_store_dwordx4 v[12:15], v3, s[32:35], s23 offen {flags}")
        if pace: o.append(f"    s_waitcnt vmcnt({pace-1})")
    o.append(f"    s_memrealtime s[62:63]")
    o.append("    s_waitcnt vmcnt(0)")
    for kc in range(2,8):
        o.append(f"    s_memrealtime s[{60+2*kc}:{61+2*kc}]")
    o.append("    s_branch L_out")
    o.append("L_w:")
    o.append("    v_lshrrev_b32 v3, 3, v2")
    o.append("    v_and_b32 v4, 7, v2")
    o.append("    v_lshlrev_b32 v3, 11, v3")
    o.append("    v_lshl_add_u32 v3, v4, 4, v3")
    o.append("    s_lshl_b32 s22, s20, 7")
    o.append("    s_lshl_b32 s37, s20, 13")
    o.append("    s_add_u32 s37, s37, 131072")
    o.append("    s_mov_b32 m0, s37")
    o.append(f"    s_mov_b32 s38, 0")
    for seg in range(8):
        o.append(f"    s_add_u32 s39, s38, 24")
        o.append(f"L_loop{seg}:")
        o.append("    s_and_b32 s23, s38, 63")
        o.append("    s_lshl_b32 s23, s23, 14")
        o.append("    s_lshr_b32 s36, s38, 6")
        o.append("    s_lshl_b32 s36, s36, 9")
        o.append("    s_add_u32 s23, s23, s36")
        o.append("    s_add_u32 s23, s23, s22")
        o.append(f"    buffer_load_dwordx4 v3, s[16:19], s23 offen lds")
        o.append(f"    s_waitcnt vmcnt({depth-1})")
        o.append("    s_add_u32 s38, s38, 1")
        o.append("    s_cmp_lt_u32 s38, s39")
        o.append(f"    s_cbranch_scc1 L_loop{seg}")
        o.append(f"    s_memrealtime s[{60+2*seg}:{61+2*seg}]")
    o.append("L_out:")
    o.append("    s_waitcnt lgkmcnt(0)")
    for i in range(8):
        o.append(f"    v_mov_b32 v{24+i}, s{60+2*i}")
    o.append("    s_lshl_b32 s26, s2, 3")
    o.append("    s_add_u32 s26, s26, s20")
    o.append("    s_lshl_b32 s26, s26, 5")
    o.append("    s_add_u32 s26, s26, 65536")
    o.append("    v_mov_b32 v6, s26")
    o.append("    buffer_store_dwordx4 v[24:27], v6, s[8:11], 0 offen")
    o.append("    buffer_store_dwordx4 v[28:31], v6, s[8:11], 0 offen offset:16")
    return "\n".join(o) + "\n"
emit("g_none_d4", body(4, 0, "", 128))
emit("g_none_d3", body(3, 0, "", 128))
emit("g_none_d2", body(2, 0, "", 128))
for fl, tg in [("", "plain"), ("sc1", "sc1"), ("sc1 nt", "sc1nt")]:
    emit(f"g_16_{tg}", body(4, 16, fl, 128))
    emit(f"g_16s64_{tg}", body(4, 16, fl, 64))
emit(f"g_16_sc1_p2", body(4, 16, "sc1", 128, 2))
emit(f"g_16_sc1_p4", body(4, 16, "sc1", 128, 4))
emit(f"g_16_sc1_p8", body(4, 16, "sc1", 128, 8))
emit(f"g_32_sc1", body(4, 32, "sc1", 128))
print(" ".join(files))
```

```python
import sys

NAME = "standalone__conformer_conv_module__speech"
P = dict(
    stamps=0,
    xd=2,
    pace=2,
    exch=1,
    stflag="sc1",
    probe=-2,
    pgrp=0,
)
out_path = None
for a in sys.argv[1:]:
    if "=" in a:
        k, v = a.split("=", 1)
        P[k] = int(v) if v.lstrip("-").isdigit() else v
    else:
        out_path = a

NWG = 250
S_X, S_W1, S_W2, S_OUT, S_DW, S_WS, S_DBG = 4, 8, 12, 16, 20, 24, 28
sW, sGRP, sPR, sRB, sRB2, sROW, sOFF, sCOL, sC = 32, 33, 34, 35, 36, 37, 38, 39, 40
sMODE = 41
sRET = 42
sQ0 = 44
sQ3 = 46
sNB = 48
sIDX = 50
sU = 51
sT0, sT1, sT2, sT3 = 52, 53, 54, 55
sPC = 56
sSPIN = 58
sSTG = 59
sST = 60
vA0, vA1, vB0, vB1, vW, vL, vT0, vT1 = 0, 1, 2, 3, 4, 5, 6, 7
AF = 8
BB = [32, 64]
SS = 96
ACC = 128

L = []
def e(s): L.append("    " + s)
def lab(s): L.append(s + ":")
def cm(s): L.append("    ; " + s)
def sr(b, n): return f"s[{b}:{b+n-1}]"
def vr(b, n): return f"v[{b}:{b+n-1}]"

class Q:
    def __init__(self, name, mx): self.name, self.mx, self.q = name, mx, []
    def push(self, tag): self.q.append(tag)
    def wait(self, tag):
        if tag not in self.q: return
        i = len(self.q) - 1 - self.q[::-1].index(tag)
        n = len(self.q) - 1 - i
        assert n <= self.mx, (self.name, n)
        e(f"s_waitcnt {self.name}({n})")
        self.q = self.q[i+1:]
    def drain(self):
        e(f"s_waitcnt {self.name}(0)"); self.q = []
    def set(self, tags): self.q = list(tags)
LG = Q("lgkmcnt", 15)
VM = Q("vmcnt", 63)

nstamp = [0]
def stamp(i):
    if P["stamps"]:
        e(f"s_memrealtime {sr(sST+2*i,2)}")

def acc1(ab, F, blk): return ACC + 32*(2*ab+F) + 4*blk
def acc2(tb, F): return ACC + 16*tb + 4*F
def afrag(g, ks): return AF + 8*(g % 3) + 4*ks
def bfrag(buf, f4, ks): return BB[buf] + 8*f4 + 4*ks

def w1_dma(tile, slot):
    ks, m, ab = slot >> 2, (slot >> 1) & 1, slot & 1
    if slot == 0: e(f"s_mov_b32 m0, s{sRB}")
    if slot == 4: e(f"s_mov_b32 m0, s{sRB2}")
    if ab == 0:
        e(f"s_add_u32 s{sOFF}, s{sCOL}, {tile*131072 + ks*65536 + m*6144}")
    e(f"buffer_load_dwordx4 v{vW}, {sr(S_W1,4)}, s{sOFF} offen offset:{2048*m+1024*ab} lds")
    VM.push(("w", tile, slot))
def w1_read(tile, slot):
    ks, m, ab = slot >> 2, (slot >> 1) & 1, slot & 1
    for F in range(2):
        d = bfrag(tile & 1, 2*ab+F, ks) + 2*m
        e(f"ds_read_b64_tr_b16 {vr(d,2)}, v{vB0+F} offset:{4096*ks+2048*m+1024*ab}")
        LG.push(("wr", tile, slot))
def x_read(g, ks):
    N, blk = g >> 3, g & 7
    e(f"ds_read_b128 {vr(afrag(g,ks),4)}, v{vA0+ks} offset:{(N&3)*16384+blk*2048}")
    LG.push(("a", g))

VF = [vA1, vB0, vB1, vT1]
def w2_dma(tile, slot):
    ks, m, gh = slot >> 2, (slot >> 1) & 1, slot & 1
    if slot == 0: e(f"s_mov_b32 m0, s{sRB}")
    if slot == 4: e(f"s_mov_b32 m0, s{sRB2}")
    e(f"s_add_u32 s{sOFF}, s{sCOL}, {tile*65536 + ks*32768 + m*6144 + gh*15360}")
    e(f"buffer_load_dwordx4 v{vW}, {sr(S_W2,4)}, s{sOFF} offen offset:{2048*m+1024*gh} lds")
    VM.push(("w", tile, slot))
def w2_read(tile, b):
    ks, m = b >> 2, (b >> 1) & 1
    for F in (2*(b & 1), 2*(b & 1)+1):
        d = bfrag(tile & 1, F, ks) + 2*m
        e(f"ds_read_b64_tr_b16 {vr(d,2)}, v{VF[F]} offset:{4096*ks+2048*m}")
        LG.push(("wr", tile, b))
def s_read(g, ks):
    N, tb = g >> 3, g & 7
    for m in range(2):
        e(f"ds_read_b64_tr_b16 {vr(afrag(g,ks)+2*m,2)}, v{vA0} offset:{(N&3)*16384+ks*8192+tb*1024+m*256}")
        LG.push(("a", g))

def mfma_seq(kind, N, blk):
    g = 8*N + blk
    seq = []
    for f4 in range(4):
        order = (0, 1) if f4 % 2 == 0 else (1, 0)
        for j, ks in enumerate(order):
            A, B = afrag(g, ks), bfrag(N & 1, f4, ks)
            if kind == 1:
                d = acc1(f4 >> 1, f4 & 1, blk); a, b = A, B
            else:
                d = acc2(blk, f4); a, b = B, A
            c = "0" if (N == 0 and j == 0) else vr(d, 4)
            seq.append(f"v_mfma_f32_16x16x32_bf16 {vr(d,4)}, {vr(a,4)}, {vr(b,4)}, {c}")
    return seq

outl = []
def cond_barrier(tag, on):
    e(f"s_cbranch_vcc{'nz' if on else 'z'} L_bar_{tag}")
    lab(f"L_barret_{tag}")
    outl.append(f"L_bar_{tag}:\n    s_barrier\n    s_branch L_barret_{tag}")

def s_write(reg0, vaddr, idx):
    F, v = idx >> 2, idx & 3
    e(f"ds_write_b128 v{vaddr}, {vr(reg0+16*F+4*v,4)} offset:{1024*(v>>1)+512*F+16*(v&1)}")
    LG.push(("sw", idx))

def g_step(kind, N, blocks=range(8), swrite=False):
    rd = x_read if kind == 1 else s_read
    for blk in blocks:
        g = 8*N + blk
        M = mfma_seq(kind, N, blk)
        pt, pb = ((N+1, blk-1) if blk > 0 else (N, 7))
        LG.wait(("wr", pt, pb)); LG.wait(("a", g))
        e(M[0])
        if N == 7 and blk == 0:
            return M
        g_block_rest(kind, N, blk, M, swrite)

def g_block_rest(kind, N, blk, M, swrite):
    rd = x_read if kind == 1 else s_read
    g = 8*N + blk
    if kind == 1:
        pt, ps = ((N+2, blk-1) if blk > 0 else (N+1, 7))
        if pt <= 7 and not (N == 0 and blk == 0): w1_dma(pt, ps)
    else:
        pt, ps = ((N+2, blk-2) if blk > 1 else (N+1, blk+6))
        if pt <= 7 and not (N == 0 and blk < 2): w2_dma(pt, ps)
    e(M[1])
    if N+1 <= 7:
        if kind == 1:
            VM.wait(("w", N+1, blk)); w1_read(N+1, blk)
        else:
            VM.wait(("w", N+1, blk | 1)); w2_read(N+1, blk)
    if swrite: s_write(SS, vT0, blk)
    e(M[2])
    g2 = g + 2
    if g2 < 64:
        if blk == 6:
            if kind == 1: cond_barrier(f"x{N+1}", 1)
            if kind == 2 and N == 5: cond_barrier("s2", 1)
            if N == 3:
                e(f"v_add_u32 v{vA0}, 0x10000, v{vA0}")
                if kind == 1: e(f"v_add_u32 v{vA1}, 0x10000, v{vA1}")
        rd(g2, 0)
    e(M[3])
    if kind == 2 and N == 1 and blk == 0: cond_barrier("z", 0)
    if g2 < 64: rd(g2, 1)
    for i in range(4, 8): e(M[i])

def g_entry_state(kind):
    VM.set([("w", 1, s) for s in range(8)])
    n = 1 if kind == 1 else 2
    LG.set([("a", 0)]*(2*n) + [("a", 1)]*(2*n))

def gen_G1():
    lab("L_G1")
    g_entry_state(1)
    e("s_setprio 0")
    for N in range(7): g_step(1, N)
    M = g_step(1, 7)
    e("s_setprio 3")
    e("s_barrier")
    e(f"s_cmp_eq_u32 s{sMODE}, 1")
    e("s_cbranch_scc1 L_G1_sw")
    st = list(LG.q)
    for sw in (False, True):
        if sw: lab("L_G1_sw")
        LG.set(st)
        g_block_rest(1, 7, 0, M, sw)
        g_step(1, 7, range(1, 8), sw)
        e(f"v_subrev_u32 v{vA0}, 0x10000, v{vA0}")
        e(f"v_subrev_u32 v{vA1}, 0x10000, v{vA1}")
        e("s_setprio 0")
        e(f"s_setpc_b64 {sr(sRET,2)}")

def gen_G2():
    lab("L_G2")
    g_entry_state(2)
    e("s_setprio 0")
    for N in range(7): g_step(2, N)
    M = g_step(2, 7)
    e("s_setprio 3")
    cond_barrier("h4", 1)
    g_block_rest(2, 7, 0, M, False)
    g_step(2, 7, range(1, 8))
    e("s_setprio 0")
    e(f"s_setpc_b64 {sr(sRET,2)}")

def prefill_issue(kind):
    VM.set([])
    for s in range(8): (w1_dma if kind == 1 else w2_dma)(0, s)
def prefill_finish(kind):
    LG.set([])
    if kind == 1:
        for s in range(8):
            VM.wait(("w", 0, s)); w1_read(0, s)
            if s == 6: LG.wait(("wr", 0, 0))
        for s in range(8):
            LG.wait(("wr", 0, s)); w1_dma(1, s)
    else:
        for b in range(8):
            VM.wait(("w", 0, b | 1)); w2_read(0, b)
            if b == 6: LG.wait(("wr", 0, 0))
        for s in range(8):
            LG.wait(("wr", 0, s | 1)); w2_dma(1, s)
def first_reads(kind):
    rd = x_read if kind == 1 else s_read
    for g in range(2):
        for ks in range(2): rd(g, ks)

EW = 64
EH = 74
ET = 82
EX = 92
EA = 90
def hreg(F, j):
    if j < 0: return EH + 4*F + (j+2)
    if j > 31: return EH + 4*F + 2 + (j-32)
    return ACC + 32*F + j
def breg(F, j): return ACC + 64 + 32*F + j
def glu(els):
    for F, j in els: e(f"v_mul_f32 v{breg(F,j)}, s{sC}, v{breg(F,j)}")
    for F, j in els: e(f"v_exp_f32 v{breg(F,j)}, v{breg(F,j)}")
    for F, j in els: e(f"v_add_f32 v{breg(F,j)}, 1.0, v{breg(F,j)}")
    for F, j in els: e(f"v_rcp_f32 v{breg(F,j)}, v{breg(F,j)}")
    for F, j in els: e(f"v_mul_f32 v{hreg(F,j)}, v{hreg(F,j)}, v{breg(F,j)}")
def conv_silu(els):
    for F, j in els: e(f"v_mul_f32 v{breg(F,j)}, v{EW+5*F}, v{hreg(F,j-2)}")
    for t in range(1, 5):
        for F, j in els: e(f"v_fmac_f32 v{breg(F,j)}, v{EW+5*F+t}, v{hreg(F,j-2+t)}")
    for i, (F, j) in enumerate(els): e(f"v_exp_f32 v{ET+i}, v{breg(F,j)}")
    for i, (F, j) in enumerate(els): e(f"v_fma_f32 v{ET+i}, v{ET+i}, s{sC}, s{sC}")
    for i, (F, j) in enumerate(els): e(f"v_rcp_f32 v{ET+i}, v{ET+i}")
    for i, (F, j) in enumerate(els): e(f"v_mul_f32 v{breg(F,j)}, v{breg(F,j)}, v{ET+i}")
    for F, j in els:
        if j % 2 == 0: e(f"v_cvt_pk_bf16_f32 v{SS+16*F+j//2}, v{breg(F,j)}, v{breg(F,j+1)}")

BND = [(F, j) for F in range(2) for j in (0, 1, 30, 31)]
def gen_Emain():
    lab("L_Emain")
    VM.set([]); LG.set([])
    cm("conv weights of this wave's 32 channels")
    e(f"v_and_b32 v{EA}, 15, v{vL}")
    e(f"v_lshlrev_b32 v{EA+1}, 1, v{EA}")
    e(f"s_add_u32 s{sT0}, s{sCOL}, 4096")
    for F in range(2):
        for t in range(5):
            so, off = (sCOL, t*1024+32*F) if t < 4 else (sT0, 32*F)
            e(f"buffer_load_ushort v{EW+5*F+t}, v{EA+1}, {sr(S_DW,4)}, s{so} offen offset:{off}")
            VM.push("dw")
    cm("boundary rows first")
    glu(BND)
    e(f"v_lshlrev_b32 v{EA}, 4, v{EA}")
    e(f"v_lshlrev_b32 v{EA+1}, 2, v{vL}")
    e(f"v_add_u32 v{ET}, 192, v{EA+1}")
    e(f"v_add_u32 v{ET+1}, 64, v{EA+1}")
    for F in range(2):
        for i in range(2):
            e(f"ds_bpermute_b32 v{hreg(F,-2+i)}, v{ET}, v{hreg(F,30+i)}"); LG.push("bp")
            e(f"ds_bpermute_b32 v{hreg(F,32+i)}, v{ET+1}, v{hreg(F,i)}"); LG.push("bp")
    if P["exch"]:
        for F in range(2):
            e(f"v_cvt_pk_bf16_f32 v{ET+2}, v{hreg(F,0)}, v{hreg(F,1)}")
            e(f"v_cvt_pk_bf16_f32 v{ET+3}, v{hreg(F,30)}, v{hreg(F,31)}")
            e(f"v_mov_b32 v{EX+2*F+1}, 1")
            e(f"v_cndmask_b32 v{EX+2*F}, v{ET+3}, v{ET+2}, {sr(sQ0,2)}")
        e(f"v_add_u32 v{ET+2}, 256, v{EA}")
        e(f"v_cndmask_b32 v{ET+3}, v{ET+2}, v{EA}, {sr(sQ0,2)}")
        e(f"s_lshl_b32 s{sT0}, s{sU}, 9")
        e(f"s_lshl_b32 s{sT1}, s2, 13")
        e(f"s_add_u32 s{sT1}, s{sT1}, s{sT0}")
        e(f"s_add_u32 s{sT0}, s{sT1}, 8192")
        e(f"s_mov_b64 exec, {sr(sNB,2)}")
        e(f"buffer_store_dwordx4 {vr(EX,4)}, v{ET+3}, {sr(S_WS,4)}, s{sT0} offen sc1"); VM.push("pub")
        e("s_mov_b64 exec, -1")
        e(f"v_add_u32 v{EA+1}, 16384, v{EA}")
        e(f"v_cndmask_b32 v{EA}, v{EA+1}, v{ET+2}, {sr(sQ0,2)}")
    inner = [[(F, j) for F in range(2) for j in range(j0, j0+4)] for j0 in range(2, 30, 4)]
    glu(inner[0])
    VM.wait("dw")
    for r in range(EW, EW+10): e(f"v_lshlrev_b32 v{r}, 16, v{r}")
    for r in range(EW, EW+10): e(f"v_mul_f32 v{r}, s{sC}, v{r}")
    LG.wait("bp")
    for i in range(7):
        if i+1 < 7: glu(inner[i+1])
        if i == 6:
            for r in range(4): e(f"v_mov_b32 v{EX+r}, 0")
            if P["exch"]:
                e(f"s_mov_b64 exec, {sr(sNB,2)}")
                e(f"buffer_load_dwordx4 {vr(EX,4)}, v{EA}, {sr(S_WS,4)}, s{sT1} offen sc1")
                e("s_mov_b64 exec, -1")
        conv_silu(inner[i])
    e(f"s_setpc_b64 {sr(sRET,2)}")

def gen_Etail():
    lab("L_Etail")
    if P["exch"]:
        e(f"s_mov_b64 exec, {sr(sNB,2)}")
        e(f"s_mov_b32 s{sSPIN}, 0x8000")
        lab("L_poll")
        e(f"v_and_b32 v{ET}, v{EX+1}, v{EX+3}")
        e(f"v_cmp_eq_u32 vcc, 1, v{ET}")
        e("s_nop 1")
        e("s_cmp_eq_u64 vcc, exec")
        e("s_cbranch_scc0 L_repoll")
        lab("L_polled")
        e("s_mov_b64 exec, -1")
        outl.append(f"""L_repoll:
    s_sub_u32 s{sSPIN}, s{sSPIN}, 1
    s_cbranch_scc1 L_polled
    buffer_load_dwordx4 {vr(EX,4)}, v{EA}, {sr(S_WS,4)}, s{sT1} offen sc1
    s_waitcnt vmcnt(0)
    s_branch L_poll""")
    for F in range(2):
        e(f"v_lshlrev_b32 v{ET+2*F}, 16, v{EX+2*F}")
        e(f"v_and_b32 v{ET+2*F+1}, 0xffff0000, v{EX+2*F}")
    for F in range(2):
        for i in range(2):
            e(f"v_cndmask_b32 v{hreg(F,-2+i)}, v{hreg(F,-2+i)}, v{ET+2*F+i}, {sr(sQ0,2)}")
            e(f"v_cndmask_b32 v{hreg(F,32+i)}, v{hreg(F,32+i)}, v{ET+2*F+i}, {sr(sQ3,2)}")
    conv_silu(BND)
    e(f"s_setpc_b64 {sr(sRET,2)}")

def call(l): e(f"s_call_b64 {sr(sRET,2)}, {l}")

def sw_addr(v, u_off):
    e(f"v_lshrrev_b32 v{v}, 4, v{vL}")
    e(f"v_lshlrev_b32 v{v}, 6, v{v}")
    e(f"v_and_or_b32 v{v}, v{vL}, 15, v{v}")
    e(f"v_lshlrev_b32 v{v}, 5, v{v}")
    e(f"s_add_u32 s{sT2}, s{sW}, {u_off}")
    e(f"s_lshl_b32 s{sT2}, s{sT2}, 13")
    e(f"v_add_u32 v{v}, s{sT2}, v{v}")

def g2_dma_addr():
    e(f"v_lshrrev_b32 v{vW}, 4, v{vL}")
    e(f"v_lshlrev_b32 v{vW}, 1, v{vW}")
    e(f"v_xor_b32 v{vW}, v{vW}, v{vL}")
    e(f"v_and_b32 v{vW}, 7, v{vW}")
    e(f"v_lshlrev_b32 v{vW}, 4, v{vW}")
    e(f"v_lshrrev_b32 v{vT1}, 3, v{vL}")
    e(f"v_lshl_add_u32 v{vW}, v{vT1}, 10, v{vW}")
    e(f"s_lshl_b32 s{sCOL}, s{sW}, 7")
def g2_read_addr():
    e(f"v_lshrrev_b32 v{vA0}, 5, v{vL}")
    e(f"v_lshlrev_b32 v{vA0}, 6, v{vA0}")
    e(f"v_and_or_b32 v{vA0}, v{vL}, 31, v{vA0}")
    e(f"v_lshlrev_b32 v{vA0}, 3, v{vA0}")
    e(f"v_lshrrev_b32 v{vA1}, 2, v{vL}")
    e(f"v_lshlrev_b32 v{vA1}, 7, v{vA1}")
    e(f"v_bfe_u32 v{vB0}, v{vL}, 3, 2")
    e(f"v_lshl_add_u32 v{vA1}, v{vB0}, 5, v{vA1}")
    e(f"v_and_b32 v{vB0}, 3, v{vL}")
    e(f"v_lshl_add_u32 v{vA1}, v{vB0}, 3, v{vA1}")
    e(f"v_add_u32 v{vA1}, s{sRB}, v{vA1}")
    e(f"v_xor_b32 v{vB0}, 32, v{vA1}")
    e(f"v_xor_b32 v{vB1}, 64, v{vA1}")
    e(f"v_xor_b32 v{vT1}, 0x60, v{vA1}")

def gen_out():
    lab("L_out")
    LG.set([]); VM.set([])
    e(f"v_and_b32 v0, 15, v{vL}")
    e(f"v_lshrrev_b32 v1, 5, v{vL}")
    e(f"v_xor_b32 v1, v1, v0")
    e(f"v_and_b32 v1, 7, v1")
    e(f"v_lshlrev_b32 v1, 4, v1")
    e(f"v_lshl_add_u32 v0, v0, 7, v1")
    e(f"v_bfe_u32 v1, v{vL}, 4, 1")
    e(f"v_lshl_add_u32 v0, v1, 3, v0")
    e(f"v_add_u32 v0, s{sSTG}, v0")
    e(f"v_xor_b32 v1, 32, v0")
    e(f"v_xor_b32 v2, 64, v0")
    e(f"v_xor_b32 v3, 0x60, v0")
    e(f"v_lshrrev_b32 v{vT0}, 3, v{vL}")
    e(f"v_xor_b32 v4, v{vT0}, v{vL}")
    e(f"v_and_b32 v4, 7, v4")
    e(f"v_lshlrev_b32 v4, 4, v4")
    e(f"v_lshl_add_u32 v4, v{vT0}, 7, v4")
    e(f"v_add_u32 v4, s{sSTG}, v4")
    e(f"v_and_b32 v{vT1}, 7, v{vL}")
    e(f"v_lshlrev_b32 v{vT1}, 4, v{vT1}")
    e(f"v_lshl_add_u32 v{vT0}, v{vT0}, 10, v{vT1}")
    e(f"s_add_u32 s{sOFF}, s{sROW}, s{sCOL}")
    def cvt(tb):
        for F in range(4):
            a = acc2(tb, F)
            e(f"v_cvt_pk_bf16_f32 v{a}, v{a}, v{a+1}")
            e(f"v_cvt_pk_bf16_f32 v{a+1}, v{a+2}, v{a+3}")
    def stage(r):
        for t2 in range(2):
            for F in range(4):
                e(f"ds_write_b64 v{F}, {vr(acc2(2*r+t2,F),2)} offset:{2048*t2}"); LG.push("ow")
        for i in range(4):
            e(f"ds_read_b128 {vr(8+16*r+4*i,4)}, v4 offset:{1024*i}"); LG.push(("or", r, i))
    def store(r, paced):
        for i in range(4):
            LG.wait(("or", r, i))
            e(f"buffer_store_dwordx4 {vr(8+16*r+4*i,4)}, v{vT0}, {sr(S_OUT,4)}, s{sOFF} offen {P['stflag']}")
            e(f"s_add_u32 s{sOFF}, s{sOFF}, 8192")
            if paced and P["pace"]: e(f"s_waitcnt vmcnt({P['pace']-1})")
    e("s_cbranch_vccz L_out_B")
    for tb in range(8): cvt(tb)
    e("s_barrier")
    stamp(12)
    for r in range(4):
        stage(r); store(r, True)
    e("s_branch L_end")
    lab("L_out_B")
    LG.set([])
    cvt(0); cvt(1); stage(0)
    for r in range(4):
        if r < 3: cvt(2*r+2); cvt(2*r+3)
        store(r, False)
        if r < 3: stage(r+1)
    lab("L_end")
    if P["stamps"]:
        stamp(13)
        e("s_waitcnt vmcnt(0)")
        stamp(14)
        e(f"s_memtime {sr(sST+2*15,2)}")
        e("s_waitcnt lgkmcnt(0)")
        e(f"s_sub_u32 s{sST+30}, s{sST+30}, s{sST+32}")
        if P["probe"] >= -1:
            e(f"s_add_u32 s{sT1}, s{sST}, 10000")
            if P["probe"] >= 0:
                e(f"s_add_u32 s{sT2}, s{sST+2*P['probe']}, 10000")
                e(f"s_cmp_eq_u32 s{sGRP}, {P['pgrp']}")
                e(f"s_cselect_b32 s{sT1}, s{sT2}, s{sT1}")
            lab("L_probe")
            e(f"s_memrealtime {sr(sPC,2)}")
            e("s_waitcnt lgkmcnt(0)")
            e(f"s_sub_u32 s{sT2}, s{sPC}, s{sT1}")
            e(f"s_cmp_lt_i32 s{sT2}, 0")
            e("s_cbranch_scc1 L_probe")
        for i in range(16): e(f"v_mov_b32 v{8+i}, s{sST+2*i}")
        e(f"s_lshl_b32 s{sT0}, s2, 3")
        e(f"s_add_u32 s{sT0}, s{sT0}, s{sW}")
        e(f"s_lshl_b32 s{sT0}, s{sT0}, 6")
        e(f"s_add_u32 s{sT0}, s{sT0}, 0x400000")
        e("v_mov_b32 v0, 0")
        e("s_mov_b64 exec, 1")
        for i in range(4):
            e(f"buffer_store_dwordx4 {vr(8+4*i,4)}, v0, {sr(S_WS,4)}, s{sT0} offen offset:{16*i}")
    e("s_endpgm")

ntouch = [0]
def touch(srd, vreg, shift, base, dst):
    ntouch[0] += 1
    e(f"s_lshl_b32 s{sT2}, s{sIDX}, {shift}")
    if isinstance(base, int): e(f"s_add_u32 s{sT2}, s{sT2}, {base}")
    else: e(f"s_add_u32 s{sT2}, s{sT2}, {base}")
    e(f"buffer_load_dword v{dst}, v{vreg}, {sr(srd,4)}, s{sT2} offen")
    e(f"s_cmp_lg_u32 s{sIDX}, 30")
    e(f"s_cbranch_scc1 L_touch{ntouch[0]}")
    e(f"s_add_u32 s{sT2}, s{sT2}, {1 << shift}")
    e(f"buffer_load_dword v{dst}, v{vreg}, {sr(srd,4)}, s{sT2} offen")
    lab(f"L_touch{ntouch[0]}")
def touch_addr1(v, t):
    e(f"v_lshrrev_b32 v{v}, 1, v{vL}")
    e(f"v_lshlrev_b32 v{v}, 10, v{v}")
    e(f"v_and_b32 v{t}, 1, v{vL}")
    e(f"v_lshl_add_u32 v{v}, v{t}, 7, v{v}")
def touch_addr2(v, t):
    e(f"v_lshrrev_b32 v{v}, 2, v{vL}")
    e(f"v_lshlrev_b32 v{v}, 10, v{v}")
    e(f"v_and_b32 v{t}, 3, v{vL}")
    e(f"v_lshl_add_u32 v{v}, v{t}, 7, v{v}")

def gen_main():
    lab(f"{NAME}_kernel")
    e(f"s_cmp_ge_u32 s2, {NWG}")
    e("s_cbranch_scc1 L_exit")
    stamp(0)
    if P["stamps"]: e(f"s_memtime {sr(sST+32,2)}")
    e(f"s_load_dwordx4 s[4:7], s[0:1], 0")
    e(f"s_load_dwordx4 s[12:15], s[0:1], 16")
    e(f"s_load_dwordx4 s[16:19], s[0:1], 32")
    e(f"s_load_dwordx2 s[24:25], s[0:1], 48")
    e(f"v_lshrrev_b32 v{vT0}, 6, v0")
    e(f"v_and_b32 v{vL}, 63, v0")
    e(f"v_readfirstlane_b32 s{sW}, v{vT0}")
    e(f"s_mov_b32 s{sC}, 0xbfb8aa3b")
    e(f"s_lshr_b32 s{sIDX}, s2, 3")
    e(f"s_lshl_b32 s{sROW}, s2, 17")
    e(f"s_lshr_b32 s{sGRP}, s{sW}, 2")
    e(f"s_and_b32 s{sPR}, s{sW}, 3")
    e(f"s_lshl_b32 s{sRB}, s{sPR}, 13")
    e(f"s_add_u32 s{sRB}, s{sRB}, 131072")
    e(f"s_add_u32 s{sRB2}, s{sRB}, 4096")
    e(f"s_lshl_b32 s{sCOL}, s{sW}, 6")
    e(f"s_mov_b32 s{sU}, s{sW}")
    e(f"s_mov_b32 s{sMODE}, 0")
    e(f"s_mov_b32 s{sQ0}, 0xffff")
    e(f"s_mov_b32 s{sQ0+1}, 0")
    e(f"s_mov_b32 s{sQ3}, 0")
    e(f"s_mov_b32 s{sQ3+1}, 0xffff0000")
    e(f"s_cmp_ge_u32 s2, 125")
    e(f"s_cselect_b32 s{sT0}, 125, 0")
    e(f"s_sub_u32 s{sT0}, s2, s{sT0}")
    e(f"s_cmp_lg_u32 s{sT0}, 0")
    e(f"s_cselect_b32 s{sNB}, 0xffff, 0")
    e(f"s_cmp_lg_u32 s{sT0}, 124")
    e(f"s_cselect_b32 s{sNB+1}, 0xffff0000, 0")
    e(f"v_lshrrev_b32 v{vT0}, 4, v{vL}")
    e(f"v_bfe_u32 v{vT1}, v{vL}, 2, 2")
    e(f"v_lshl_add_u32 v{vW}, v{vT0}, 3, v{vT1}")
    e(f"v_lshlrev_b32 v{vW}, 11, v{vW}")
    e(f"v_lshlrev_b32 v{vT1}, 1, v{vT0}")
    e(f"v_xor_b32 v{vT1}, v{vT1}, v{vL}")
    e(f"v_and_b32 v{vT1}, 3, v{vT1}")
    e(f"v_lshl_add_u32 v{vW}, v{vT1}, 4, v{vW}")
    e(f"v_lshrrev_b32 v{vB0}, 2, v{vL}")
    e(f"v_lshlrev_b32 v{vB0}, 6, v{vB0}")
    e(f"v_and_b32 v{vT1}, 1, v{vT0}")
    e(f"v_lshl_add_u32 v{vB0}, v{vT1}, 5, v{vB0}")
    e(f"v_and_b32 v{vT1}, 3, v{vL}")
    e(f"v_lshl_add_u32 v{vB0}, v{vT1}, 3, v{vB0}")
    e(f"v_add_u32 v{vB0}, s{sRB}, v{vB0}")
    e(f"v_xor_b32 v{vB1}, 32, v{vB0}")
    e(f"v_bfe_u32 v{vT1}, v{vL}, 1, 3")
    e(f"v_xor_b32 v{vT1}, v{vT1}, v{vT0}")
    e(f"v_lshlrev_b32 v{vT1}, 4, v{vT1}")
    e(f"v_and_b32 v{vA0}, 15, v{vL}")
    e(f"v_lshl_add_u32 v{vA0}, v{vA0}, 7, v{vT1}")
    e(f"v_xor_b32 v{vA1}, 64, v{vA0}")
    e("s_waitcnt lgkmcnt(0)")
    e("s_mov_b32 s8, s6"); e("s_mov_b32 s9, s7")
    e("s_mov_b32 s20, s12"); e("s_mov_b32 s21, s13")
    e("s_mov_b32 s12, s14"); e("s_mov_b32 s13, s15")
    e("s_mov_b32 s28, s18"); e("s_mov_b32 s29, s19")
    for b, n in ((S_X, 32768000), (S_W1, 1048576), (S_W2, 524288), (S_OUT, 32768000), (S_DW, 5120),
                 (S_WS, 0x800000 if P["stamps"] else 252*8192), (S_DBG, 256)):
        e(f"s_mov_b32 s{b+2}, {n}")
        e(f"s_mov_b32 s{b+3}, 0x20000")
    e(f"s_cmp_eq_u32 s{sGRP}, 1")
    e("s_cbranch_scc1 L_B")

    cm("group A")
    e(f"s_cmp_eq_u32 s{sW}, 0")
    e("s_cbranch_scc0 L_A_t1")
    touch_addr1(8, 9)
    touch(S_W1, 8, 15, 0, 10)
    lab("L_A_t1")
    e(f"s_cmp_eq_u32 s{sW}, 1")
    e("s_cbranch_scc0 L_A_t2")
    e(f"s_getpc_b64 {sr(sPC,2)}")
    lab("L_pc")
    e(f"s_and_b32 s{sT0}, s{sIDX}, 3")
    e(f"s_lshl_b32 s{sT0}, s{sT0}, 13")
    e(f"v_lshl_add_u32 v8, v{vL}, 7, s{sT0}")
    e(f"v_min_u32 v8, L_exit-L_pc, v8")
    e(f"global_load_dword v10, v8, {sr(sPC,2)}")
    lab("L_A_t2")
    prefill_issue(1)
    prefill_finish(1)
    stamp(1)
    e("s_barrier")
    first_reads(1)
    e("s_mov_b64 vcc, -1")
    stamp(2)
    call("L_G1")
    stamp(3)
    e("s_nop 7")
    call("L_Emain")
    stamp(4)
    e("s_barrier")
    e(f"s_add_u32 s{sCOL}, s{sCOL}, 512")
    e(f"s_add_u32 s{sU}, s{sU}, 8")
    prefill_issue(1)
    e("s_waitcnt vmcnt(8)")
    call("L_Etail")
    prefill_finish(1)
    first_reads(1)
    e("s_mov_b64 vcc, 0")
    stamp(5)
    call("L_G1")
    stamp(6)
    for r in range(32): e(f"v_mov_b32 v{BB[0]+r}, v{SS+r}")
    call("L_Emain")
    g2_dma_addr()
    sw_addr(vT0, 0)
    stamp(7)
    e("s_barrier")
    prefill_issue(2)
    for i in range(8): s_write(BB[0], vT0, i)
    e("s_waitcnt vmcnt(8)")
    call("L_Etail")
    e(f"v_add_u32 v{vT0}, 0x10000, v{vT0}")
    for i in range(8): s_write(SS, vT0, i)
    g2_read_addr()
    prefill_finish(2)
    e("s_waitcnt lgkmcnt(0)")
    stamp(8)
    e("s_barrier")
    first_reads(2)
    e("s_mov_b64 vcc, -1")
    stamp(9)
    call("L_G2")
    stamp(10)
    e(f"s_lshl_b32 s{sSTG}, s{sPR}, 12")
    e("s_branch L_out")

    lab("L_B")
    VM.set([])
    if P["exch"]:
        cm("clear this workgroup's outbound hand-off slots (2 KB per wave)")
        for r in range(8, 12): e(f"v_mov_b32 v{r}, 0")
        e(f"v_lshlrev_b32 v12, 4, v{vL}")
        e(f"s_lshl_b32 s{sT0}, s2, 13")
        e(f"s_lshl_b32 s{sT1}, s{sPR}, 11")
        e(f"s_add_u32 s{sT0}, s{sT0}, s{sT1}")
        e(f"s_add_u32 s{sT0}, s{sT0}, 8192")
        e(f"buffer_store_dwordx4 v[8:11], v12, {sr(S_WS,4)}, s{sT0} offen sc1")
        e(f"buffer_store_dwordx4 v[8:11], v12, {sr(S_WS,4)}, s{sT0} offen offset:1024 sc1")
    e(f"s_and_b32 s{sT0}, s{sPR}, 1")
    e(f"s_lshl_b32 s{sT1}, s{sT0}, 2")
    e(f"v_lshrrev_b32 v13, 4, v{vL}")
    e(f"v_xor_b32 v13, v13, v{vL}")
    e(f"v_xor_b32 v13, s{sT1}, v13")
    e(f"v_and_b32 v13, 7, v13")
    e(f"v_lshlrev_b32 v13, 4, v13")
    e(f"v_lshrrev_b32 v14, 5, v{vL}")
    e(f"v_lshl_add_u32 v13, v14, 15, v13")
    e(f"v_bfe_u32 v14, v{vL}, 3, 2")
    e(f"v_lshl_add_u32 v13, v14, 10, v13")
    e(f"s_lshl_b32 s{sT0}, s{sT0}, 16")
    e(f"s_lshr_b32 s{sT1}, s{sPR}, 1")
    e(f"s_lshl_b32 s{sT1}, s{sT1}, 12")
    e(f"s_add_u32 s{sT0}, s{sT0}, s{sT1}")
    e(f"s_add_u32 s{sT0}, s{sT0}, s{sROW}")
    e(f"s_lshl_b32 s{sT1}, s{sPR}, 10")
    def x_dma(kc):
        for u in range(4):
            e(f"s_add_u32 m0, s{sT1}, {kc*16384 + u*4096}")
            e(f"s_add_u32 s{sOFF}, s{sT0}, {kc*128 + u*8192}")
            e(f"buffer_load_dwordx4 v13, {sr(S_X,4)}, s{sOFF} offen nt lds")
            VM.push(("x", kc))
    XD = P["xd"]
    for kc in range(XD): x_dma(kc)
    touch_addr1(15, 14)
    touch_addr2(16, 14)
    e(f"v_lshlrev_b32 v17, 7, v{vL}")
    if P["exch"]:
        e(f"v_lshrrev_b32 v18, 4, v{vL}")
        e(f"v_and_b32 v18, 2, v18")
        e(f"s_sub_u32 s{sT3}, s2, 1")
        e(f"v_add_u32 v18, s{sT3}, v18")
        e(f"v_mov_b32 v19, 1")
        e(f"v_mov_b32 v20, s2")
    for kc in range(8):
        VM.wait(("x", kc))
        if kc == 1:
            e(f"s_cmp_eq_u32 s{sPR}, 0")
            e("s_cbranch_scc0 L_B_t1")
            if P["exch"]:
                e("s_mov_b64 exec, 1")
                e(f"buffer_store_byte v19, v20, {sr(S_DBG,4)}, 0 offen sc1")
                e("s_mov_b64 exec, -1")
            e(f"buffer_load_dword v21, v17, {sr(S_DW,4)}, 0 offen")
            lab("L_B_t1")
            e(f"s_cmp_eq_u32 s{sPR}, 1")
            e("s_cbranch_scc0 L_B_t2")
            touch(S_W1, 15, 15, 256, 21)
            lab("L_B_t2")
        if P["exch"] and kc == 7-XD:
            e(f"s_cmp_eq_u32 s{sPR}, 0")
            e("s_cbranch_scc0 L_B_f1")
            e(f"s_mov_b64 exec, {sr(sNB,2)}")
            e(f"buffer_load_ubyte v22, v18, {sr(S_DBG,4)}, 0 offen sc1")
            e("s_mov_b64 exec, -1")
            lab("L_B_f1")
        if kc+XD < 8: x_dma(kc+XD)
        if kc == 7-XD:
            cm("warm the later weights")
            e(f"s_lshl_b32 s{sT3}, s{sPR}, 8")
            e(f"s_cmp_ge_u32 s{sPR}, 2")
            e("s_cbranch_scc1 L_B_t3")
            e(f"s_add_u32 s{sT3}, s{sT3}, 512")
            touch(S_W1, 15, 15, f"s{sT3}", 21)
            e("s_branch L_B_t4")
            lab("L_B_t3")
            e(f"s_lshl_b32 s{sT3}, s{sT3}, 1")
            e(f"s_sub_u32 s{sT3}, s{sT3}, 1024")
            touch(S_W2, 16, 14, f"s{sT3}", 21)
            lab("L_B_t4")
            VM.push("touch")
        if P["exch"] and kc == 7:
            e(f"s_cmp_eq_u32 s{sPR}, 0")
            e("s_cbranch_scc0 L_B_f2")
            e(f"s_mov_b64 exec, {sr(sNB,2)}")
            e(f"s_mov_b32 s{sSPIN}, 0x8000")
            lab("L_fpoll")
            e(f"v_cmp_ne_u32 vcc, 0, v22")
            e("s_nop 1")
            e("s_cmp_eq_u64 vcc, exec")
            e("s_cbranch_scc0 L_frepoll")
            lab("L_fpolled")
            e("s_mov_b64 exec, -1")
            outl.append(f"""L_frepoll:
    s_sub_u32 s{sSPIN}, s{sSPIN}, 1
    s_cbranch_scc1 L_fpolled
    buffer_load_ubyte v22, v18, {sr(S_DBG,4)}, 0 offen sc1
    s_waitcnt vmcnt(0)
    s_branch L_fpoll""")
            lab("L_B_f2")
        if kc == 0: stamp(1)
        if kc == 7: stamp(2)
        e("s_barrier")
    e("s_barrier")
    prefill_issue(1)
    prefill_finish(1)
    first_reads(1)
    e("s_mov_b64 vcc, 0")
    stamp(3)
    call("L_G1")
    stamp(4)
    e("s_nop 7")
    call("L_Emain")
    stamp(5)
    e("s_barrier")
    e(f"s_add_u32 s{sCOL}, s{sCOL}, 512")
    e(f"s_add_u32 s{sU}, s{sU}, 8")
    prefill_issue(1)
    e("s_waitcnt vmcnt(8)")
    call("L_Etail")
    sw_addr(vT0, 0)
    prefill_finish(1)
    first_reads(1)
    e("s_mov_b64 vcc, 0")
    e(f"s_mov_b32 s{sMODE}, 1")
    stamp(6)
    call("L_G1")
    e("s_waitcnt lgkmcnt(0)")
    stamp(7)
    e("s_barrier")
    e("s_nop 7")
    call("L_Emain")
    e("s_waitcnt vmcnt(0)")
    call("L_Etail")
    e(f"v_add_u32 v{vT0}, 0x10000, v{vT0}")
    for i in range(8): s_write(SS, vT0, i)
    g2_dma_addr()
    g2_read_addr()
    e("s_waitcnt lgkmcnt(0)")
    stamp(8)
    e("s_barrier")
    e("s_barrier")
    prefill_issue(2)
    prefill_finish(2)
    first_reads(2)
    e("s_mov_b64 vcc, 0")
    stamp(9)
    call("L_G2")
    stamp(10)
    e(f"s_mov_b32 s{sSTG}, s{sRB}")
    gen_out()
    gen_G1()
    gen_Emain()
    gen_Etail()
    gen_G2()
    for o in outl: L.append(o)
    lab("L_exit")
    e("s_endpgm")

HEAD = f"""; Fused conformer conv module: GEMM1 + GLU + depthwise conv + SiLU + GEMM2, one 128-row tile per workgroup.
; @launch grid=({NWG},1,1) block=(512,1,1) lds=163840
.amdgcn_target "amdgcn-amd-amdhsa--gfx950"
.text
.globl {NAME}_kernel
.p2align 8
.type {NAME}_kernel,@function
"""
TAIL = f"""
.section .rodata,"a"
.p2align 6
.amdhsa_kernel {NAME}_kernel
  .amdhsa_next_free_vgpr 256
  .amdhsa_next_free_sgpr 102
  .amdhsa_accum_offset 256
  .amdhsa_group_segment_fixed_size 0
  .amdhsa_kernarg_size 56
  .amdhsa_user_sgpr_count 2
  .amdhsa_user_sgpr_kernarg_segment_ptr 1
  .amdhsa_system_sgpr_workgroup_id_x 1
.end_amdhsa_kernel
"""
gen_main()
txt = HEAD + "\n".join(L) + TAIL
if out_path is None: out_path = f"cdna_kernels/{NAME}.s"
open(out_path, "w").write(txt)
```

```python
import sys, io, contextlib
with contextlib.redirect_stdout(io.StringIO()):
    from gen_mem import *
files.clear()
def body(depth, seg, xthr, xseg=128, prioB=0):
    o = ["    s_mov_b32 s48, 0"]
    o.append("    s_lshr_b32 s21, s2, 3")
    o.append("    s_lshl_b32 s21, s21, 15")
    o.append("    s_lshl_b32 s22, s20, 12")
    o.append("    s_add_u32 s21, s21, s22")
    o.append("    v_lshlrev_b32 v3, 6, v2")
    o.append("    buffer_load_dword v20, v3, s[16:19], s21 offen")
    o.append("    s_waitcnt vmcnt(0)")
    o.append("""
    s_add_u32 s50, s40, 300
L_spin:
    s_memrealtime s[52:53]
    s_waitcnt lgkmcnt(0)
    s_sub_u32 s54, s52, s50
    s_cmp_lt_i32 s54, 0
    s_cbranch_scc1 L_spin
""")
    o.append("    s_cmp_lt_u32 s20, 4")
    o.append("    s_cbranch_scc1 L_w")
    o.append(f"    s_setprio {prioB}")
    if xthr:
        if xseg == 128:
            o.append("    v_lshrrev_b32 v3, 3, v2"); o.append("    v_and_b32 v4, 7, v2")
            go = lambda kc,q: kc*128 + q*8192
        elif xseg == 256:
            o.append("    v_lshrrev_b32 v3, 4, v2"); o.append("    v_and_b32 v4, 15, v2")
            go = lambda kc,q: (kc//2)*256 + ((kc%2)*4+q)*4096
        else:
            o.append("    v_mov_b32 v3, 0"); o.append("    v_mov_b32 v4, v2")
            go = lambda kc,q: (kc*4+q)*1024
        o.append("    v_lshlrev_b32 v3, 10, v3")
        o.append("    v_lshl_add_u32 v3, v4, 4, v3")
        o.append("    s_lshl_b32 s21, s2, 17")
        o.append("    s_sub_u32 s22, s20, 4")
        o.append("    s_lshl_b32 s22, s22, 15")
        o.append("    s_add_u32 s21, s21, s22")
        done = 0
        for i in range(32+xthr-1):
            if i < 32:
                kc, q = i//4, i%4
                o.append(f"    s_add_u32 s23, s21, {go(kc,q)}")
                o.append(f"    s_add_u32 m0, s22, {i*1024}")
                o.append(f"    s_nop 0")
                o.append(f"    buffer_load_dwordx4 v3, s[12:15], s23 offen nt lds")
            if i >= xthr-1:
                o.append(f"    s_waitcnt vmcnt({min(xthr-1, 31-(i-xthr+1))})")
                done += 1
                if done % 4 == 0: o.append(f"    s_memrealtime s[{60+2*(done//4-1)}:{61+2*(done//4-1)}]")
    else:
        for kc in range(8): o.append(f"    s_memrealtime s[{60+2*kc}:{61+2*kc}]")
    o.append("    s_branch L_out")
    o.append("L_w:")
    if depth:
        if seg == 64:
            o.append("    v_lshrrev_b32 v3, 2, v2"); o.append("    v_and_b32 v4, 3, v2"); o.append("    s_lshl_b32 s22, s20, 6")
            go = lambda i: (i//2)*32768 + (i%2)*1024
        else:
            o.append("    v_lshrrev_b32 v3, 3, v2"); o.append("    v_and_b32 v4, 7, v2"); o.append("    s_lshl_b32 s22, s20, 7")
            go = lambda i: i*16384
        o.append("    v_lshlrev_b32 v3, 11, v3")
        o.append("    v_lshl_add_u32 v3, v4, 4, v3")
        o.append("    s_lshl_b32 s37, s20, 13")
        o.append("    s_add_u32 m0, s37, 131072")
        done = 0
        for i in range(64+depth-1):
            if i < 64:
                o.append(f"    s_add_u32 s23, s22, {go(i)}")
                o.append(f"    buffer_load_dwordx4 v3, s[16:19], s23 offen lds")
            if i >= depth-1:
                o.append(f"    s_waitcnt vmcnt({min(depth-1, 63-(i-depth+1))})")
                done += 1
                if done % 8 == 0: o.append(f"    s_memrealtime s[{60+2*(done//8-1)}:{61+2*(done//8-1)}]")
    else:
        for kc in range(8): o.append(f"    s_memrealtime s[{60+2*kc}:{61+2*kc}]")
    o.append("L_out:")
    o.append("    s_waitcnt lgkmcnt(0)")
    for i in range(8):
        o.append(f"    v_mov_b32 v{24+i}, s{60+2*i}")
    o.append("    s_lshl_b32 s26, s2, 3")
    o.append("    s_add_u32 s26, s26, s20")
    o.append("    s_lshl_b32 s26, s26, 5")
    o.append("    s_add_u32 s26, s26, 65536")
    o.append("    v_mov_b32 v6, s26")
    o.append("    buffer_store_dwordx4 v[24:27], v6, s[8:11], 0 offen")
    o.append("    buffer_store_dwordx4 v[28:31], v6, s[8:11], 0 offen offset:16")
    return "\n".join(o) + "\n"
for t in [2,3,4,6,8]: emit(f"k_xonly_t{t}", body(0, 64, t))
emit(f"k_xonly256_t4", body(0, 64, 4, 256))
emit(f"k_xonly1k_t4", body(0, 64, 4, 1024))
for seg in [64,128]:
    emit(f"k_wonly{seg}_d8", body(8, seg, 0))
    for d,t in [(8,4),(10,5),(12,6),(8,6),(16,8)]:
        emit(f"k_s{seg}_d{d}_t{t}", body(d, seg, t, prioB=1))
emit(f"k_s64_d8_t4_x1k", body(8, 64, 4, 1024, prioB=1))
emit(f"k_s128_d8_t4_x1k", body(8, 128, 4, 1024, prioB=1))
print(" ".join(files))
```

```python
import sys

NAME = "standalone__conformer_conv_module__speech"
P = dict(
    stamps=0,
    p0=2,
    xpat="10",
    pace=2,
    exch=1,
    inb=4,
    stflag="sc1",
    sched1="D.Vt.u.Ba.b.m.o.W",
    sched2="D.Vt.u.Ba.b.cm.do.",
    sched0="D.Vt.u.Ba.b.X.mo.",
    hb=3,
    ypos=620,
    xflag="nt", ext=0, pro=1, x1n=0, xd=5, xd0=5, gprio=2, s1g=4, s1pos=340, hpos=1030, gahead=3, gentle=1, tsp=6, tlag=10, st2=1, noast=0, sflag=1,
    tland=48,
    tch=15, tflag="", t0st=0,
    nodma=0, bench=0, probe=-2, pgrp=0,
)
out_path = None
for a in sys.argv[1:]:
    if "=" in a:
        k, v = a.split("=", 1)
        assert k in P, k
        P[k] = int(v) if (v.lstrip("-").isdigit() and not isinstance(P[k], str)) else v
    else:
        out_path = a

NWG = 250
S_X, S_W1, S_W2, S_OUT, S_DW, S_WS, S_DBG = 4, 8, 12, 16, 20, 24, 28
sW, sGRP, sPR, sRB, sXG, sROW, sOFF, sCOL, sC = 32, 33, 34, 35, 36, 37, 38, 39, 40
sMODE = 41
sRET = 42
sQ0 = 44
sQ3 = 46
sNB = 48
sIDX = 50
sU = 51
sT0, sT1, sT2, sT3 = 52, 53, 54, 55
sPC = 56
sSPIN = 58
sXL = 59
sST = 60
sDUM = 94
sTB = 96
vA0, vA1, vB0, vB1, vW, vL, vSW, vX = 0, 1, 2, 3, 4, 5, 6, 7
AF = 8
BB = [32, 64]
SS = 96
ACC = 128

L = []
def e(s): L.append("    " + s)
def lab(s): L.append(s + ":")
def cm(s): L.append("    ; " + s)
def sr(b, n): return f"s[{b}:{b+n-1}]"
def vr(b, n): return f"v[{b}:{b+n-1}]"

class Q:
    def __init__(self, name, mx): self.name, self.mx, self.q = name, mx, []
    def push(self, tag): self.q.append(tag)
    def wait(self, tag):
        if tag not in self.q: return
        i = len(self.q) - 1 - self.q[::-1].index(tag)
        n = min(len(self.q) - 1 - i, self.mx)
        e(f"s_waitcnt {self.name}({n})")
        self.q = self.q[len(self.q)-n:]
    def wait_first(self, tag):
        if tag not in self.q: return
        n = min(len(self.q) - 1 - self.q.index(tag), self.mx)
        e(f"s_waitcnt {self.name}({n})")
        self.q = self.q[len(self.q)-n:]
    def drain(self):
        e(f"s_waitcnt {self.name}(0)"); self.q = []
    def set(self, tags): self.q = list(tags)
LG = Q("lgkmcnt", 15)
VM = Q("vmcnt", 63)

def stamp(i, force=False):
    if P["t0st"] and 4 <= i <= 12 and not force: return
    if P["stamps"] == 1: e(f"s_memrealtime {sr(sST+2*i,2)}")
    if P["stamps"] == 2: e(f"s_memtime {sr(sST+2*i,2)}")

def acc1(ab, F, blk): return ACC + 32*(2*ab+F) + 4*blk
def acc2(tb, F): return ACC + 16*tb + 4*F
def afrag(g, ks): return AF + 8*(g % 3) + 4*ks
def bfrag(buf, f4, ks): return BB[buf] + 8*f4 + 4*ks

def w_m0(kind, slot, always=False):
    if kind == 2: e(f"s_add_u32 m0, s{sRB}, {1024*slot - 64*(slot & 1)}")
    elif slot % 4 == 0 or always: e(f"s_add_u32 m0, s{sRB}, {4096*(slot >> 2)}")
def w_off(kind, tile, slot, col=sCOL):
    ks, m, ab = slot >> 2, (slot >> 1) & 1, slot & 1
    if ab: return
    nx = 0
    if tile == 8: tile, nx = 0, (0 if col != sCOL else 256*kind)
    if kind == 2: e(f"s_add_u32 s{sOFF}, s{col}, {nx + tile*65536 + ks*32768 + m*8192}")
    else: e(f"s_add_u32 s{sOFF}, s{col}, {nx + tile*131072 + ks*65536 + m*6144}")
def w_dma(kind, tile, slot, prep=True, vo=vW):
    ks, m, ab = slot >> 2, (slot >> 1) & 1, slot & 1
    if prep:
        w_m0(kind, slot); w_off(kind, tile, slot)
        if kind == 2 and ab: e("s_nop 0")
    if kind == 1: e(f"buffer_load_dwordx4 v{vo}, {sr(S_W1,4)}, s{sOFF} offen offset:{2048*m+1024*ab} lds")
    else: e(f"buffer_load_dwordx4 v{vo}, {sr(S_W2,4)}, s{sOFF} offen offset:{64*ab} lds")
    VM.push(("w", tile, slot))
def w_read(tile, slot, which=(0, 1)):
    ks, m, ab = slot >> 2, (slot >> 1) & 1, slot & 1
    for F in which:
        d = bfrag(tile & 1, 2*ab+F, ks) + 2*m
        e(f"ds_read_b64_tr_b16 {vr(d,2)}, v{vB0+F} offset:{1024*slot}")
        LG.push(("wr", tile, slot))
def x_read(g, ks):
    N, blk = g >> 3, g & 7
    e(f"ds_read_b128 {vr(afrag(g,ks),4)}, v{vA0+ks} offset:{(N&3)*16384+blk*2048}")
    LG.push(("a", g))
def s_read(g, ks, which=(0, 1)):
    N, tb = g >> 3, g & 7
    for m in which:
        e(f"ds_read_b64_tr_b16 {vr(afrag(g,ks)+2*m,2)}, v{vA0} offset:{(N&3)*16384+ks*8192+tb*1024+m*256}")
        LG.push(("a", g))
def x_dma(kc, u):
    e(f"s_add_u32 m0, s{sXL}, {kc*16384 + u*4096}")
    e(f"s_add_u32 s{sT0}, s{sXG}, {kc*128 + u*8192}")
    e(f"buffer_load_dwordx4 v{vX}, {sr(S_X,4)}, s{sT0} offen {P['xflag']} lds")
    VM.push(("x", kc))
SWH = [0]
def s_write(dst, idx):
    F, v = idx >> 2, idx & 3
    if SWH[0] != (v & 1):
        e(f"v_xor_b32 v{vSW}, 16, v{vSW}"); SWH[0] ^= 1
    e(f"ds_write_b128 v{vSW}, {vr(dst(F,4*v),4)} offset:{1024*(v>>1)+512*F}")
    LG.push(("sw", idx))
def dst_ss(F, p): return SS + 16*F + p
def dst_b(F, p): return ACC + 64 + 32*F + p
SW_ORDER = [0, 2, 4, 6, 1, 3, 5, 7]

def mfma_seq(kind, N, blk):
    g = 8*N + blk
    seq = []
    for f4 in range(4):
        order = (0, 1) if f4 % 2 == 0 else (1, 0)
        for j, ks in enumerate(order):
            A, B = afrag(g, ks), bfrag(N & 1, f4, ks)
            if kind == 1:
                d = acc1(f4 >> 1, f4 & 1, blk); a, b = A, B
            else:
                d = acc2(blk, f4); a, b = B, A
            c = "0" if (N == 0 and j == 0) else vr(d, 4)
            seq.append(f"v_mfma_f32_16x16x32_bf16 {vr(d,4)}, {vr(a,4)}, {vr(b,4)}, {c}")
    return seq

outl = []
def cond_barrier(tag, on):
    e(f"s_cbranch_vcc{'nz' if on else 'z'} L_bar_{tag}")
    lab(f"L_barret_{tag}")
    outl.append(f"L_bar_{tag}:\n    s_barrier\n    s_branch L_barret_{tag}")

def dma_of(g, nxt):
    N, blk = g >> 3, g & 7
    pt, ps = ((N+2, blk-1) if blk >= 1 else (N+1, 7))
    if pt > 8 or g == 0 or (pt == 8 and not nxt): return None
    return pt, ps

T0 = dict(todo=[], published=0, bars=[], phys={}, issue={})
vE0 = SS
sRX = 97
def t0_plan():
    ph, iss = T0["phys"], T0["issue"]
    for s_ in range(8): ph[s_] = s_; ph[8+s_] = 8+s_; ph[16+s_] = s_
    nxt = 24
    for g in range(1, 57):
        p = ph[g-1+8]
        if nxt >= 64:
            if p < 8: iss[g] = 64+p; ph[64+p] = p
            continue
        last = 37 if p < 12 else 29
        if p >= 8 and nxt-8 > last: continue
        ph[nxt] = p; iss[g] = nxt; nxt += 1
    assert sorted(n for n in ph if n >= 64) == list(range(64, 72))
def t0_m0(n):
    p, s_ = T0["phys"][n], n & 7
    imm = 1024*(s_ & 3)
    if p < 8: e(f"s_add_u32 m0, s{sRB}, {(1024*p - imm) & 0xffffffff}")
    else: e(f"s_add_u32 m0, s{sRX}, {((16384 if p < 12 else 0) + 1024*(p & 3) - imm) & 0xffffffff}")
def t0_read(n, F):
    p, tile, slot = T0["phys"][n], n >> 3, n & 7
    ks, m, ab = slot >> 2, (slot >> 1) & 1, slot & 1
    d = bfrag(tile & 1, 2*ab+F, ks) + 2*m
    if p < 8: e(f"ds_read_b64_tr_b16 {vr(d,2)}, v{vB0+F} offset:{1024*p}")
    else: e(f"ds_read_b64_tr_b16 {vr(d,2)}, v{vE0+F} offset:{(16384 if p < 12 else 0) + 1024*(p & 3)}")
    LG.push(("wr", tile, slot))
def t0_dma(n):
    t0_m0(n); w_off(1, n >> 3, n & 6); w_dma(1, n >> 3, n & 7, prep=False)
def g_block(kind, N, blk, var=""):
    g = 8*N + blk
    g2 = g + 2
    t0 = var == "t0"
    nxt = var != "B"
    M = mfma_seq(kind, N, blk)
    pt, pb = ((N+1, blk-1) if blk > 0 else (N, 7))
    LG.wait(("wr", pt, pb)); LG.wait(("a", g))
    def tgt(d):
        return (2, sT3, vX) if (var == "sw" and d[0] == 8) else (kind, sCOL, vW)
    def act(c):
        if t0 and P["ext"] and c in "DmotuXB":
            n, n1 = T0["issue"].get(g), T0["issue"].get(g+1)
            if c == "D":
                if n is not None: w_dma(1, n >> 3, n & 7, prep=False)
                if g == 56: e("s_setprio 3")
            elif c == "m":
                if n1 is not None: t0_m0(n1)
            elif c == "o":
                if n1 is not None: w_off(1, n1 >> 3, n1 & 6)
            elif c in "tu":
                if N+1 <= 7: t0_read(g+8, "tu".index(c))
            elif c == "B" and g2 < 64 and blk == 6:
                e("s_barrier")
                if N == 3:
                    e(f"v_add_u32 v{vA0}, 0x10000, v{vA0}")
                    e(f"v_add_u32 v{vA1}, 0x10000, v{vA1}")
            return
        if c == "D":
            d = dma_of(g, nxt)
            if d and not P["nodma"]: w_dma(tgt(d)[0], *d, prep=False, vo=tgt(d)[2])
            if var == "sw" and g == 32: e("s_barrier")
            if N == 7 and blk == 0: e("s_setprio 3")
            if N == 7 and blk == P["hb"] and nxt:
                VM.drain(); e("s_barrier")
        elif c == "m":
            d = dma_of(g+1, nxt)
            if d: w_m0(tgt(d)[0], d[1], t0)
        elif c == "o":
            d = dma_of(g+1, nxt)
            if d: w_off(tgt(d)[0], *d, col=tgt(d)[1])
        elif c == "V":
            if N+1 <= 7: VM.wait(("w", N+1, blk))
        elif c in "tu":
            if N+1 <= 7: w_read(N+1, blk, ("tu".index(c),))
        elif c == "W":
            if var == "sw" and N in (4, 5) and blk % 2 == 1: s_write(dst_ss, SW_ORDER[(g-32)//2])
        elif c == "X":
            if T0["todo"] and P["xpat"][g % len(P["xpat"])] != "0":
                for _ in range(int(P["xpat"][g % len(P["xpat"])])):
                    if T0["todo"]: x_dma(*T0["todo"].pop(0))
        elif c == "B":
            if g2 < 64 and blk == 6:
                if t0 and T0["published"] < N+1:
                    assert all(kc > N+1 for kc, _ in T0["todo"]), "x chunk issued too late"
                    VM.wait(("x", N+1))
                    c2 = N+1
                    while c2+1 <= 7 and c2+1 >= P["p0"] and ("x", c2+1) not in VM.q and all(kc > c2+1 for kc, _ in T0["todo"]): c2 += 1
                    T0["bars"].append(N+1); T0["published"] = c2
                    e("s_barrier")
                if kind == 2 and N == 5: cond_barrier("s2", 1)
                if N == 3:
                    e(f"v_add_u32 v{vA0}, 0x10000, v{vA0}")
                    if kind == 1: e(f"v_add_u32 v{vA1}, 0x10000, v{vA1}")
            if kind == 2 and g == P["s1g"]: cond_barrier("s1", 1)
            if kind == 2 and g == 8: cond_barrier("z", 0)
        elif c in "abcd":
            if g2 < 64:
                i = "abcd".index(c)
                if kind == 1:
                    if i < 2: x_read(g2, i)
                else: s_read(g2, i >> 1, (i & 1,))
    gaps = P["sched0" if t0 else "sched1" if kind == 1 else "sched2"].split(".")
    assert len(gaps) == 8
    for i in range(8):
        e(M[i])
        for c in gaps[i]: act(c)

def g_entry_state(kind):
    VM.set([("w", 1, s) for s in range(8)])
    LG.set([("a", 0)]*(2*kind) + [("a", 1)]*(2*kind))

def gen_G1():
    lab("L_G1")
    g_entry_state(1)
    e(f"s_setprio {P['gprio']}")
    for N in range(4):
        lab(f"L_G1_step{N}")
        for b in range(8): g_block(1, N, b)
    e(f"s_cmp_eq_u32 s{sMODE}, 1")
    e("s_cbranch_scc1 L_G1_sw")
    st = (list(LG.q), list(VM.q))
    for var in ("", "sw"):
        if var: lab("L_G1_sw")
        LG.set(st[0]); VM.set(st[1]); SWH[0] = 0
        for N in range(4, 8):
            if not var: lab(f"L_G1_step{N}")
            for b in range(8):
                if not var and N == 7 and b == 1: lab("L_G1_blk57")
                g_block(1, N, b, var)
        if not var:
            e(f"v_subrev_u32 v{vA0}, 0x10000, v{vA0}")
            e(f"v_subrev_u32 v{vA1}, 0x10000, v{vA1}")
        e("s_setprio 0")
        e(f"s_setpc_b64 {sr(sRET,2)}")

def gen_G1T0():
    lab("L_G1T0")
    g_entry_state(1)
    e(f"s_setprio {P['gprio']}")
    if P["ext"]:
        t0_plan()
        VM.set([("w", t, s_) for t in (1, 2) for s_ in range(8)])
        for g in range(57):
            g_block(1, g >> 3, g & 7, "t0")
            if P["t0st"] == 1 and g & 7 == 7: stamp(4+(g >> 3), True)
        T0["bars"] = list(range(1, 8))
        e("s_branch L_G1_blk57")
        return
    T0["todo"] = [(kc, u) for kc in range(P["p0"], 8) for u in range(4)]
    N = 0
    while T0["published"] < 7:
        for b in range(8): g_block(1, N, b, "t0")
        if P["t0st"] == 1: stamp(4+N, True)
        N += 1
    e(f"s_branch L_G1_step{N}")

def gen_G2():
    lab("L_G2")
    g_entry_state(2)
    e(f"s_setprio {P['gprio']}")
    for N in range(6):
        for b in range(8): g_block(2, N, b)
    e("s_cbranch_vccz L_G2_B")
    st = (list(LG.q), list(VM.q))
    for var in "AB":
        if var == "B": lab("L_G2_B")
        LG.set(st[0]); VM.set(st[1])
        for N in range(6, 8):
            for b in range(8): g_block(2, N, b, var)
        e("s_setprio 0")
        gen_out(var)

def first_reads(kind):
    rd = x_read if kind == 1 else s_read
    for g in range(2):
        for ks in range(2): rd(g, ks)
def takeover_ops(kind, sp=None):
    sp, lag = (P["tsp"] if sp is None else sp), P["tlag"]
    ops = []
    for s in range(8):
        ops.append((sp*s, lambda s=s: (VM.wait(("w", 0, s)), w_read(0, s, (0,)))))
        ops.append((sp*s+2, lambda s=s: w_read(0, s, (1,))))
        ops.append((lag+sp*s-2, lambda s=s: (w_m0(kind, s), w_off(kind, 1, s))))
        ops.append((lag+sp*s, lambda s=s: (LG.wait(("wr", 0, s)), w_dma(kind, 1, s, prep=False))))
    return ops
def merge(valu, ops):
    ops = sorted(enumerate(ops), key=lambda t: (t[1][0], t[0]))
    pos = 0; k = 0
    for ins in valu:
        while k < len(ops) and ops[k][1][0] <= pos: ops[k][1][1](); k += 1
        e(ins); pos += 2 if ins.startswith(("v_exp", "v_rcp")) else 1
    while k < len(ops): ops[k][1][1](); k += 1
def takeover(kind):
    LG.set([])
    merge([], takeover_ops(kind, 3))
def stouch_base(kind, col):
    e(f"s_lshl_b32 s{sTB}, s{sIDX}, 2")
    e(f"s_add_u32 s{sTB}, s{sTB}, s{sPR}")
    e(f"s_mul_i32 s{sTB}, s{sTB}, {5*(2048 if kind == 1 else 1024)}")
    e(f"s_add_u32 s{sTB}, s{sTB}, {col}")
def stouch(kind, i):
    r, l = i >> 2, i & 3
    off = r*2048 + (l & 1)*128 + (l >> 1)*1024 if kind == 1 else i*128
    S_TCH = S_W1 if kind == 1 else S_W2
    if P["st2"]: e(f"s_buffer_load_dwordx2 {sr(sDUM,2)}, {sr(S_TCH,4)}, s{sTB} offset:{off+60}")
    else: e(f"s_buffer_load_dword s{sDUM}, {sr(S_TCH,4)}, s{sTB} offset:{off}")

EW = 64
EH = 74
ET = 82
EA = 90
EX = 92
def hreg(F, j):
    if j < 0: return EH + 4*F + (j+2)
    if j > 31: return EH + 4*F + 2 + (j-32)
    return ACC + 32*F + j
def breg(F, j): return ACC + 64 + 32*F + j
def glu(els):
    o = []
    for F, j in els: o.append(f"v_mul_f32 v{breg(F,j)}, s{sC}, v{breg(F,j)}")
    for F, j in els: o.append(f"v_exp_f32 v{breg(F,j)}, v{breg(F,j)}")
    for F, j in els: o.append(f"v_add_f32 v{breg(F,j)}, 1.0, v{breg(F,j)}")
    for F, j in els: o.append(f"v_rcp_f32 v{breg(F,j)}, v{breg(F,j)}")
    for F, j in els: o.append(f"v_mul_f32 v{hreg(F,j)}, v{hreg(F,j)}, v{breg(F,j)}")
    return o
EO = AF + 16
EB = AF
def conv_silu(els, dst):
    o = []
    for i, (F, j) in enumerate(els): o.append(f"v_mul_f32 v{EO+i}, v{EW+5*F}, v{hreg(F,j-2)}")
    for t in range(1, 5):
        for i, (F, j) in enumerate(els): o.append(f"v_fmac_f32 v{EO+i}, v{EW+5*F+t}, v{hreg(F,j-2+t)}")
    for i, (F, j) in enumerate(els): o.append(f"v_exp_f32 v{ET+i}, v{EO+i}")
    for i, (F, j) in enumerate(els): o.append(f"v_fma_f32 v{ET+i}, v{ET+i}, s{sC}, s{sC}")
    for i, (F, j) in enumerate(els): o.append(f"v_rcp_f32 v{ET+i}, v{ET+i}")
    for i, (F, j) in enumerate(els): o.append(f"v_mul_f32 v{EO+i}, v{EO+i}, v{ET+i}")
    for i, (F, j) in enumerate(els):
        if j % 2 == 0: o.append(f"v_cvt_pk_bf16_f32 v{dst(F,j//2)}, v{EO+i}, v{EO+i+1}")
    return o
def emit(lst):
    for s in lst: e(s)
def slots(lst): return sum(2 if i.startswith(("v_exp", "v_rcp")) else 1 for i in lst)

BND = [(F, j) for F in range(2) for j in (0, 1, 30, 31)]
def e_stream(var, tag):
    dst = dst_ss if var == 1 else dst_b
    marks = {}
    v = []; ops = []
    v.append(f"v_and_b32 v{EA}, 15, v{vL}")
    v.append(f"v_lshlrev_b32 v{EA+1}, 1, v{EA}")
    v.append(f"v_lshlrev_b32 v{EA}, 4, v{EA}")
    v.append(f"v_lshlrev_b32 v{EB}, 2, v{vL}")
    v += glu(BND)
    p_bnd = slots(v)
    if P["exch"]:
        for F in range(2):
            v.append(f"v_cvt_pk_bf16_f32 v{ET+2}, v{hreg(F,0)}, v{hreg(F,1)}")
            v.append(f"v_cvt_pk_bf16_f32 v{ET+3}, v{hreg(F,30)}, v{hreg(F,31)}")
            v.append(f"v_mov_b32 v{EX+2*F+1}, 1")
            v.append(f"v_cndmask_b32 v{EX+2*F}, v{ET+3}, v{ET+2}, {sr(sQ0,2)}")
        v.append(f"v_add_u32 v{ET+2}, 256, v{EA}")
        v.append(f"v_add_u32 v{ET+4}, 16384, v{EA}")
        v.append(f"v_cndmask_b32 v{ET+3}, v{ET+2}, v{EA}, {sr(sQ0,2)}")
        v.append(f"v_cndmask_b32 v{EA}, v{ET+4}, v{ET+2}, {sr(sQ0,2)}")
        def publish():
            e(f"s_mov_b64 exec, {sr(sNB,2)}")
            e(f"buffer_store_dwordx4 {vr(EX,4)}, v{ET+3}, {sr(S_WS,4)}, s{sT0} offen sc1"); VM.push("pub")
            e("s_mov_b64 exec, -1")
        ops.append((slots(v), publish))
    inner = [[(F, j) for F in range(2) for j in range(j0, j0+4)] for j0 in range(2, 30, 4)]
    GA = P["gahead"]
    for i in range(GA): v += glu(inner[i])
    p_w = slots(v)
    k = 0
    for F in range(2):
        for t in range(5):
            so, off = (sCOL, t*1024+32*F) if t < 4 else (sT2, 32*F)
            ops.append((4 + k*(p_w-70)//10, lambda F=F, t=t, so=so, off=off: (
                e(f"buffer_load_ushort v{EW+5*F+t}, v{EA+1}, {sr(S_DW,4)}, s{so} offen offset:{off}"), VM.push("dw"))))
            k += 1
    ops.append((p_w, lambda: VM.wait("dw")))
    for r in range(EW, EW+10): v.append(f"v_lshlrev_b32 v{r}, 16, v{r}")
    for r in range(EW, EW+10): v.append(f"v_mul_f32 v{r}, s{sC}, v{r}")
    k = 0
    for F in range(2):
        for i in range(2):
            ops.append((p_w+30+40*k, lambda F=F, i=i: e(f"ds_bpermute_b32 v{hreg(F,-2+i)}, v{EB}, v{hreg(F,30+i)} offset:192")))
            ops.append((p_w+50+40*k, lambda F=F, i=i: e(f"ds_bpermute_b32 v{hreg(F,32+i)}, v{EB}, v{hreg(F,i)} offset:64")))
            k += 1
    base = 0
    def inbound():
        if P["exch"]:
            e(f"s_mov_b64 exec, {sr(sNB,2)}")
            e(f"buffer_load_dwordx4 {vr(EX,4)}, v{EA}, {sr(S_WS,4)}, s{sT1} offen sc1")
            e("s_mov_b64 exec, -1")
    for i in range(7):
        if i == P["inb"]:
            v += [f"v_mov_b32 v{EX}, 0", f"v_mov_b32 v{EX+2}, 0"]
            ops.append((slots(v), inbound))
            assert slots(v) < P["hpos"]
        v += conv_silu(inner[i], dst)
        marks[i] = slots(v)
        if i+GA < 7: v += glu(inner[i+GA])
    if var == 1: ops.append((P["s1pos"], lambda: cond_barrier("s1e", 1)))
    if P["tch"] & 4:
        n = 20*var
        for i in range(n): ops.append((9+i*(600//n), lambda i=i: stouch(var, i)))
    if var == 2:
        y = P["ypos"] - base
        ops.append((y, lambda: e("s_barrier")))
        SWH[0] = 0
        for k, i in enumerate(SW_ORDER): ops.append((y+8+30*k, lambda i=i: s_write(dst_ss, i)))
    if P["t0st"] == 2 and var == 1:
        for k in range(7): ops.append((200*k, lambda k=k: stamp(4+k, True)))
    def poll():
        VM.wait("old"); LG.wait("old")
        if not P["exch"]: return
        e(f"s_mov_b64 exec, {sr(sNB,2)}")
        e(f"s_mov_b32 s{sSPIN}, 0x8000")
        lab(f"L_poll{tag}")
        e(f"v_and_b32 v{EA+1}, v{EX+1}, v{EX+3}")
        e(f"v_cmp_eq_u32 vcc, 1, v{EA+1}")
        e("s_nop 1")
        e("s_cmp_eq_u64 vcc, exec")
        e(f"s_cbranch_scc0 L_repoll{tag}")
        lab(f"L_polled{tag}")
        e("s_mov_b64 exec, -1")
        outl.append(f"""L_repoll{tag}:
    s_sub_u32 s{sSPIN}, s{sSPIN}, 1
    s_cbranch_scc1 L_polled{tag}
    buffer_load_dwordx4 {vr(EX,4)}, v{EA}, {sr(S_WS,4)}, s{sT1} offen sc1
    s_waitcnt vmcnt(0)
    s_branch L_poll{tag}""")
    assert slots(v) >= P["hpos"]
    ops.append((slots(v), poll))
    v += etail(dst)
    return v, ops, marks

def e_split(v):
    pos = 0
    for n, ins in enumerate(v):
        if pos >= P["hpos"]: return n, pos
        pos += slots([ins])
def e_head(var):
    VM.set([]); LG.set([])
    e(f"s_add_u32 s{sT2}, s{sCOL}, 4096")
    e(f"s_lshl_b32 s{sT0}, s{sU}, 9")
    e(f"s_lshl_b32 s{sT1}, s2, 13")
    e(f"s_add_u32 s{sT1}, s{sT1}, s{sT0}")
    e(f"s_add_u32 s{sT0}, s{sT1}, 8192")
    v, ops, marks = e_stream(var, "x")
    n, pos = e_split(v)
    merge(v[:n], [o for o in ops if o[0] < pos])
def e_rest(var, tag, extra, swr):
    h = SWH[0]
    v, ops, marks = e_stream(var, tag)
    SWH[0] = h
    n, pos = e_split(v)
    VM.set(["old"]); LG.set(["old"])
    ops = [(p-pos, f) for p, f in ops if p >= pos] + extra
    dst = dst_ss if var == 1 else dst_b
    if swr:
        p0 = max(marks[5]-pos, swr)
        for k, i in enumerate((1, 5, 2, 6)): ops.append((p0+12*k, lambda i=i: s_write(dst, i)))
    merge(v[n:], ops)
    if swr:
        for i in (0, 4, 3, 7): s_write(dst, i)

def etail(dst):
    o = []
    for F in range(2):
        o.append(f"v_lshlrev_b32 v{ET+2*F}, 16, v{EX+2*F}")
        o.append(f"v_and_b32 v{ET+2*F+1}, 0xffff0000, v{EX+2*F}")
    for F in range(2):
        for i in range(2):
            o.append(f"v_cndmask_b32 v{hreg(F,-2+i)}, v{hreg(F,-2+i)}, v{ET+2*F+i}, {sr(sQ0,2)}")
            o.append(f"v_cndmask_b32 v{hreg(F,32+i)}, v{hreg(F,32+i)}, v{ET+2*F+i}, {sr(sQ3,2)}")
    return o + conv_silu(BND, dst)

def gen_E1():
    lab("L_E1")
    e_head(1)
    e(f"s_cbranch_vccnz L_E1_ret")
    outl.append(f"L_E1_ret:\n    s_setpc_b64 {sr(sRET,2)}")
    stamp(5)
    e("s_barrier")
    e("s_setprio 1")
    e(f"s_add_u32 s{sCOL}, s{sCOL}, 512")
    e(f"s_add_u32 s{sU}, s{sU}, 8")
    e_rest(1, "a", takeover_ops(1) + [(70+4*k, lambda k=k: x_read(k >> 1, k & 1)) for k in range(4)], 0)
    stamp(11)

def call(l): e(f"s_call_b64 {sr(sRET,2)}, {l}")

def g1_addr():
    e(f"v_lshrrev_b32 v{vB0}, 2, v{vL}")
    e(f"v_lshlrev_b32 v{vB0}, 6, v{vB0}")
    e(f"v_bfe_u32 v{vB1}, v{vL}, 4, 1")
    e(f"v_lshl_add_u32 v{vB0}, v{vB1}, 5, v{vB0}")
    e(f"v_and_b32 v{vB1}, 3, v{vL}")
    e(f"v_lshl_add_u32 v{vB0}, v{vB1}, 3, v{vB0}")
    e(f"v_add_u32 v{vB0}, s{sRB}, v{vB0}")
    e(f"v_xor_b32 v{vB1}, 32, v{vB0}")
    e(f"v_lshrrev_b32 v{vSW}, 4, v{vL}")
    e(f"v_bfe_u32 v{vA1}, v{vL}, 1, 3")
    e(f"v_xor_b32 v{vA1}, v{vA1}, v{vSW}")
    e(f"v_lshlrev_b32 v{vA1}, 4, v{vA1}")
    e(f"v_and_b32 v{vA0}, 15, v{vL}")
    e(f"v_lshl_add_u32 v{vA0}, v{vA0}, 7, v{vA1}")
    e(f"v_xor_b32 v{vA1}, 64, v{vA0}")
    e(f"v_lshlrev_b32 v{vSW}, 6, v{vSW}")
    e(f"v_and_or_b32 v{vSW}, v{vL}, 15, v{vSW}")
    e(f"v_lshlrev_b32 v{vSW}, 5, v{vSW}")
    e(f"v_bfe_u32 v9, v{vL}, 2, 1")
    e(f"v_lshl_add_u32 v{vSW}, v9, 4, v{vSW}")
    e(f"s_lshl_b32 s{sT2}, s{sW}, 13")
    e(f"v_add_u32 v{vSW}, s{sT2}, v{vSW}")
def w2_voff(d, t):
    e(f"v_and_b32 v{d}, 0x30, v{vW}")
    e(f"v_lshrrev_b32 v{t}, 5, v{vL}")
    e(f"v_lshl_add_u32 v{d}, v{t}, 14, v{d}")
    e(f"v_bfe_u32 v{t}, v{vL}, 2, 3")
    e(f"v_lshl_add_u32 v{d}, v{t}, 10, v{d}")
def g2_addr():
    e(f"s_lshl_b32 s{sCOL}, s{sW}, 7")
    g2_addr_v()
def g2_addr_v():
    e(f"v_lshrrev_b32 v{vA0}, 5, v{vL}")
    e(f"v_lshlrev_b32 v{vA0}, 6, v{vA0}")
    e(f"v_and_or_b32 v{vA0}, v{vL}, 31, v{vA0}")
    e(f"v_lshlrev_b32 v{vA0}, 3, v{vA0}")
    e(f"v_and_b32 v{vA1}, 16, v{vL}")
    e(f"v_xor_b32 v{vA0}, v{vA0}, v{vA1}")

OW, OR, OG = SS, SS+4, SS+5
def out_addr(stg):
    t = SS+6
    e(f"v_and_b32 v{OW}, 15, v{vL}")
    e(f"v_lshrrev_b32 v{t}, 5, v{vL}")
    e(f"v_xor_b32 v{t}, v{t}, v{OW}")
    e(f"v_and_b32 v{t}, 7, v{t}")
    e(f"v_lshlrev_b32 v{t}, 4, v{t}")
    e(f"v_lshl_add_u32 v{OW}, v{OW}, 7, v{t}")
    e(f"v_bfe_u32 v{t}, v{vL}, 4, 1")
    e(f"v_lshl_add_u32 v{OW}, v{t}, 3, v{OW}")
    e(f"v_add_u32 v{OW}, s{stg}, v{OW}")
    for F in range(1, 4): e(f"v_xor_b32 v{OW+F}, {32*F}, v{OW}")
    e(f"v_lshrrev_b32 v{OG}, 3, v{vL}")
    e(f"v_xor_b32 v{OR}, v{OG}, v{vL}")
    e(f"v_and_b32 v{OR}, 7, v{OR}")
    e(f"v_lshlrev_b32 v{OR}, 4, v{OR}")
    e(f"v_lshl_add_u32 v{OR}, v{OG}, 7, v{OR}")
    e(f"v_add_u32 v{OR}, s{stg}, v{OR}")
    e(f"v_and_b32 v{t}, 7, v{vL}")
    e(f"v_lshlrev_b32 v{t}, 4, v{t}")
    e(f"v_lshl_add_u32 v{OG}, v{OG}, 10, v{t}")

def gen_out(var):
    LG.set([]); VM.set([])
    stamp(10)
    e(f"s_add_u32 s{sOFF}, s{sROW}, s{sCOL}")
    def cvt(tb):
        for F in range(4):
            a = acc2(tb, F)
            e(f"v_cvt_pk_bf16_f32 v{a}, v{a}, v{a+1}")
            e(f"v_cvt_pk_bf16_f32 v{a+1}, v{a+2}, v{a+3}")
    def stage(r):
        for t2 in range(2):
            for F in range(4):
                e(f"ds_write_b64 v{OW+F}, {vr(acc2(2*r+t2,F),2)} offset:{2048*t2}"); LG.push("ow")
        for i in range(4):
            e(f"ds_read_b128 {vr(8+16*r+4*i,4)}, v{OR} offset:{1024*i}"); LG.push(("or", r, i))
    def store(r, paced):
        for i in range(4):
            LG.wait(("or", r, i))
            if not (paced and P["noast"]): e(f"buffer_store_dwordx4 {vr(8+16*r+4*i,4)}, v{OG}, {sr(S_OUT,4)}, s{sOFF} offen {P['stflag']}")
            e(f"s_add_u32 s{sOFF}, s{sOFF}, 8192")
            if paced and P["pace"]: e(f"s_waitcnt vmcnt({P['pace']-1})")
    if var == "A":
        e(f"s_lshl_b32 s{sT2}, s{sPR}, 12")
        out_addr(sT2)
        for tb in range(8): cvt(tb)
        e("s_barrier")
        stamp(12)
        if P["gentle"]:
            for tb in range(8):
                for F in range(4):
                    e(f"ds_write_b64 v{OW+F}, {vr(acc2(tb,F),2)} offset:{2048*(tb&1)}")
                    if F % P["gentle"] == P["gentle"]-1: e("s_waitcnt lgkmcnt(0)")
                for i in range(2):
                    e(f"ds_read_b128 {vr(8+8*tb+4*i,4)}, v{OR} offset:{2048*(tb&1)+1024*i}")
                    e("s_waitcnt lgkmcnt(0)")
                    if P["pace"]: e(f"s_waitcnt vmcnt({P['pace']-1})")
                    if not P["noast"]: e(f"buffer_store_dwordx4 {vr(8+8*tb+4*i,4)}, v{OG}, {sr(S_OUT,4)}, s{sOFF} offen {P['stflag']}")
                    e(f"s_add_u32 s{sOFF}, s{sOFF}, 8192")
        else:
          for r in range(4):
            if P["noast"] < 2: stage(r); store(r, True)
        e("s_branch L_end")
        return
    cvt(0); cvt(1); stage(0)
    for r in range(4):
        if r < 3: cvt(2*r+2); cvt(2*r+3)
        store(r, False)
        if r < 3: stage(r+1)
    lab("L_end")
    if P["stamps"]:
        stamp(13)
        e("s_waitcnt vmcnt(0)")
        stamp(14)
        e(f"s_memtime {sr(sST+2*15,2)}")
        e("s_waitcnt lgkmcnt(0)")
        e(f"s_sub_u32 s{sST+30}, s{sST+30}, s{sST+32}")
        if P["probe"] >= -1:
            e(f"s_add_u32 s{sT1}, s{sST}, 10000")
            if P["probe"] >= 0:
                e(f"s_add_u32 s{sT2}, s{sST+2*P['probe']}, 10000")
                e(f"s_cmp_eq_u32 s{sGRP}, {P['pgrp']}")
                e(f"s_cselect_b32 s{sT1}, s{sT2}, s{sT1}")
            lab("L_probe")
            e(f"s_memrealtime {sr(sPC,2)}")
            e("s_waitcnt lgkmcnt(0)")
            e(f"s_sub_u32 s{sT2}, s{sPC}, s{sT1}")
            e(f"s_cmp_lt_i32 s{sT2}, 0")
            e("s_cbranch_scc1 L_probe")
        for i in range(16): e(f"v_mov_b32 v{8+i}, s{sST+2*i}")
        e(f"s_lshl_b32 s{sT0}, s2, 3")
        e(f"s_add_u32 s{sT0}, s{sT0}, s{sW}")
        e(f"s_lshl_b32 s{sT0}, s{sT0}, 6")
        e(f"s_add_u32 s{sT0}, s{sT0}, 0x400000")
        e("v_mov_b32 v0, 0")
        e("s_mov_b64 exec, 1")
        for i in range(4):
            e(f"buffer_store_dwordx4 {vr(8+4*i,4)}, v0, {sr(S_WS,4)}, s{sT0} offen offset:{16*i}")
    e("s_endpgm")

ntouch = [0]
def touch(srd, vreg, shift, base, dst):
    ntouch[0] += 1
    e(f"s_lshl_b32 s{sT2}, s{sIDX}, {shift}")
    e(f"s_add_u32 s{sT2}, s{sT2}, {base}")
    e(f"buffer_load_dword v{dst}, v{vreg}, {sr(srd,4)}, s{sT2} offen {P['tflag']}")
    e(f"s_cmp_lg_u32 s{sIDX}, 30")
    e(f"s_cbranch_scc1 L_touch{ntouch[0]}")
    e(f"s_add_u32 s{sT2}, s{sT2}, {1 << shift}")
    e(f"buffer_load_dword v{dst}, v{vreg}, {sr(srd,4)}, s{sT2} offen {P['tflag']}")
    lab(f"L_touch{ntouch[0]}")
def touch_addr1(v, t):
    e(f"v_lshrrev_b32 v{v}, 1, v{vL}")
    e(f"v_lshlrev_b32 v{v}, 10, v{v}")
    e(f"v_and_b32 v{t}, 1, v{vL}")
    e(f"v_lshl_add_u32 v{v}, v{t}, 7, v{v}")
def touch_addr2(v, t):
    e(f"v_lshrrev_b32 v{v}, 2, v{vL}")
    e(f"v_lshlrev_b32 v{v}, 10, v{v}")
    e(f"v_and_b32 v{t}, 3, v{vL}")
    e(f"v_lshl_add_u32 v{v}, v{t}, 7, v{v}")
nonly = [0]
class only_wave:
    def __init__(self, pr): self.pr = pr
    def __enter__(self):
        nonly[0] += 1; self.l = f"L_only{nonly[0]}"
        e(f"s_cmp_eq_u32 s{sPR}, {self.pr}"); e(f"s_cbranch_scc0 {self.l}")
    def __exit__(self, *a): lab(self.l)

def gen_main():
    global L
    main = L; L = []; gen_G1T0(); t0_code = L; L = main

    lab(f"{NAME}_kernel")
    e(f"s_cmp_ge_u32 s2, {NWG}")
    e("s_cbranch_scc1 L_exit")
    e(f"s_load_dwordx4 s[4:7], s[0:1], 0")
    e(f"s_load_dwordx4 s[12:15], s[0:1], 16")
    e(f"s_load_dwordx4 s[16:19], s[0:1], 32")
    e(f"s_load_dwordx2 s[24:25], s[0:1], 48")
    stamp(0)
    if P["stamps"]: e(f"s_memtime {sr(sST+32,2)}")
    e(f"v_lshrrev_b32 v8, 6, v0")
    e(f"v_and_b32 v{vL}, 63, v0")
    e(f"v_readfirstlane_b32 s{sW}, v8")
    e(f"s_mov_b32 s{sC}, 0xbfb8aa3b")
    e(f"s_lshr_b32 s{sIDX}, s2, 3")
    e(f"s_lshl_b32 s{sROW}, s2, 17")
    e(f"s_lshr_b32 s{sGRP}, s{sW}, 2")
    e(f"s_and_b32 s{sPR}, s{sW}, 3")
    e(f"s_lshl_b32 s{sRB}, s{sPR}, 13")
    e(f"s_add_u32 s{sRB}, s{sRB}, 131072")
    e(f"s_lshl_b32 s{sCOL}, s{sW}, 6")
    e(f"s_mov_b32 s{sU}, s{sW}")
    e(f"s_mov_b32 s{sMODE}, 0")
    e(f"s_mov_b32 s{sQ0}, 0xffff")
    e(f"s_mov_b32 s{sQ0+1}, 0")
    e(f"s_mov_b32 s{sQ3}, 0")
    e(f"s_mov_b32 s{sQ3+1}, 0xffff0000")
    e(f"s_cmp_ge_u32 s2, 125")
    e(f"s_cselect_b32 s{sT0}, 125, 0")
    e(f"s_sub_u32 s{sT0}, s2, s{sT0}")
    e(f"s_cmp_lg_u32 s{sT0}, 0")
    e(f"s_cselect_b32 s{sNB}, 0xffff, 0")
    e(f"s_cmp_lg_u32 s{sT0}, 124")
    e(f"s_cselect_b32 s{sNB+1}, 0xffff0000, 0")
    e(f"v_lshrrev_b32 v8, 4, v{vL}")
    e(f"v_bfe_u32 v9, v{vL}, 2, 2")
    e(f"v_lshl_add_u32 v{vW}, v8, 3, v9")
    e(f"v_lshlrev_b32 v{vW}, 11, v{vW}")
    e(f"v_lshlrev_b32 v9, 1, v8")
    e(f"v_xor_b32 v9, v9, v{vL}")
    e(f"v_and_b32 v9, 3, v9")
    e(f"v_lshl_add_u32 v{vW}, v9, 4, v{vW}")
    e(f"s_and_b32 s{sT0}, s{sPR}, 1")
    e(f"s_lshl_b32 s{sT1}, s{sT0}, 2")
    e(f"v_xor_b32 v{vX}, v8, v{vL}")
    e(f"v_xor_b32 v{vX}, s{sT1}, v{vX}")
    e(f"v_and_b32 v{vX}, 7, v{vX}")
    e(f"v_lshlrev_b32 v{vX}, 4, v{vX}")
    e(f"v_lshrrev_b32 v9, 5, v{vL}")
    e(f"v_lshl_add_u32 v{vX}, v9, 15, v{vX}")
    e(f"v_bfe_u32 v9, v{vL}, 3, 2")
    e(f"v_lshl_add_u32 v{vX}, v9, 10, v{vX}")
    e(f"s_lshl_b32 s{sT0}, s{sT0}, 16")
    e(f"s_lshr_b32 s{sT1}, s{sPR}, 1")
    e(f"s_lshl_b32 s{sT1}, s{sT1}, 12")
    e(f"s_add_u32 s{sT0}, s{sT0}, s{sT1}")
    e(f"s_add_u32 s{sXG}, s{sT0}, s{sROW}")
    e(f"s_lshl_b32 s{sXL}, s{sPR}, 10")
    if not P["pro"]: g1_addr()
    touch_addr1(15, 14)
    e("s_waitcnt lgkmcnt(0)")
    if P["t0st"] == 3: stamp(4, True)
    e("s_mov_b32 s8, s6"); e("s_mov_b32 s9, s7")
    def srd(b, n):
        e(f"s_mov_b32 s{b+2}, {n}"); e(f"s_mov_b32 s{b+3}, 0x20000")
    srd(S_X, 32768000); srd(S_W1, 1048576)
    def late_srds():
        e("s_mov_b32 s20, s12"); e("s_mov_b32 s21, s13")
        e("s_mov_b32 s12, s14"); e("s_mov_b32 s13, s15")
        e("s_mov_b32 s28, s18"); e("s_mov_b32 s29, s19")
        srd(S_W2, 524288); srd(S_OUT, 32768000); srd(S_DW, 5120)
        srd(S_WS, 0x800000 if P["stamps"] else 252*8192); srd(S_DBG, 256)
    e(f"s_cmp_eq_u32 s{sGRP}, 1")
    e("s_cbranch_scc1 L_B")

    if P["bench"]:
        if P["pro"]: g1_addr()
        late_srds()
        touch_addr2(16, 14)
        e(f"s_lshl_b32 s{sT3}, s{sPR}, 8")
        touch(S_W1, 15, 15, f"s{sT3}", 10)
        touch(S_W2, 16, 14, 0, 10)
        for kc in range(8):
            for u in range(4): x_dma(kc, u)
        e("s_waitcnt vmcnt(0)")
        e("s_barrier")
        for rep in range(3):
            VM.set([]); first_reads(1); takeover(1)
            stamp(1+2*rep); call("L_G1"); stamp(2+2*rep)
            e(f"s_add_u32 s{sCOL}, s{sCOL}, 256")
        w2_voff(vW, 8); g2_addr(); out_addr(sRB)
        VM.set([]); first_reads(2); takeover(2)
        e("s_mov_b64 vcc, 0")
        stamp(9)
        e("s_branch L_G2")
    cm("group A")
    VM.set([])
    if P["pro"]:
        g1_addr(); late_srds()
        if P["pro"] == 1: e("s_barrier")
    for s in range(8): w_dma(1, 0, s)
    if P["t0st"] == 3: stamp(5, True)
    if not P["pro"]: late_srds()
    if P["ext"]:
        e(f"s_lshl_b32 s{sRX}, s{sPR}, 12")
        e(f"s_add_u32 s{sRX}, s{sRX}, 98304")
        e(f"s_sub_u32 s{sT0}, s{sRB}, s{sRX}")
        e(f"v_subrev_u32 v{vE0}, s{sT0}, v{vB0}")
        e(f"v_subrev_u32 v{vE0+1}, s{sT0}, v{vB1}")
        for s in range(8): t0_dma(8+s)
        LG.set([])
        for s in range(8):
            VM.wait(("w", 0, s))
            if P["t0st"] == 3 and s in (0, 7): stamp(6 if s == 0 else 7, True)
            w_read(0, s)
            if s >= 2: LG.wait(("wr", 0, s-2)); t0_dma(16+s-2)
        for s in (6, 7): LG.wait(("wr", 0, s)); t0_dma(16+s)
    elif P["t0st"] == 3:
        VM.wait(("w", 0, 0)); stamp(6, True); VM.wait(("w", 0, 7)); stamp(7, True); takeover(1)
    else:
        takeover(1)
    stamp(1)
    e("s_barrier")
    first_reads(1)
    stamp(2)
    call("L_G1T0")
    stamp(3)
    stouch_base(1, 512)
    e("s_mov_b64 vcc, 0")
    call("L_E1")
    stamp(6)
    stouch_base(2, 0)
    w2_voff(vW, vA0)
    g2_addr_v()
    e_head(2)
    e(f"v_add_u32 v{vSW}, 0x10000, v{vSW}")
    e(f"s_lshl_b32 s{sCOL}, s{sW}, 7")
    e("s_waitcnt lgkmcnt(0)")
    stamp(7)
    e("s_barrier")
    e("s_setprio 1")
    e_rest(2, "b", takeover_ops(2) + [(60+6*k, lambda k=k: s_read(k >> 1, k & 1)) for k in range(4)], 90)
    e("s_mov_b64 vcc, -1")
    stamp(9)
    e("s_branch L_G2")

    lab("L_B")
    if P["bench"]: e("s_endpgm")
    VM.set([])
    if P["pro"]:
        e("s_setprio 3")
        with only_wave(0): touch(S_W1, 15, 15, 0, 100)
        for u in range(4): x_dma(0, u)
        for u in range(P["x1n"]): x_dma(1, u)
        if P["pro"] == 1: e("s_barrier")
        if P["t0st"] == 3: stamp(5, True)
        e("s_setprio 0")
        g1_addr()
    else:
        for u in range(4): x_dma(0, u)
        with only_wave(0): touch(S_W1, 15, 15, 0, 100)
    late_srds()
    if P["tch"] & 16:
        touch_addr2(16, 14)
        with only_wave(1): touch(S_W1, 15, 15, 256, 100)
        with only_wave(2): touch(S_W1, 15, 15, 512, 100); touch(S_W2, 16, 14, 0, 100)
        with only_wave(3): touch(S_W1, 15, 15, 768, 100); touch(S_W2, 16, 14, 512, 100)
    with only_wave(1):
        e(f"s_getpc_b64 {sr(sPC,2)}")
        lab("L_pc")
        e(f"s_and_b32 s{sT0}, s{sIDX}, 7")
        e(f"s_lshl_b32 s{sT0}, s{sT0}, 13")
        e(f"v_lshl_add_u32 v8, v{vL}, 7, s{sT0}")
        e(f"v_min_u32 v8, L_exit-L_pc, v8")
        e(f"global_load_dword v100, v8, {sr(sPC,2)}")
    xq = [(kc, u) for kc in range(1, 8) for u in range(4)]
    if P["ext"]:
        done = [-1]
        def xfill(lim=None):
            while xq and sum(1 for t in VM.q if t[0] == "x") < (lim or P["xd"]) and (xq[0][0] < 6 or done[0] >= xq[0][0]-2):
                x_dma(*xq.pop(0))
        xfill(P["xd0"])
    else:
        for kc in range(1, P["p0"]):
            for u in range(4):
                if not (P["pro"] and kc == 1 and u < P["x1n"]): x_dma(kc, u)
    if P["exch"]:
        cm("clear this workgroup's outbound hand-off slots (2 KB per wave)")
        for r in range(8, 12): e(f"v_mov_b32 v{r}, 0")
        e(f"v_lshlrev_b32 v12, 4, v{vL}")
        e(f"s_lshl_b32 s{sT0}, s2, 13")
        e(f"s_lshl_b32 s{sT1}, s{sPR}, 11")
        e(f"s_add_u32 s{sT0}, s{sT0}, s{sT1}")
        e(f"s_add_u32 s{sT0}, s{sT0}, 8192")
        e(f"buffer_store_dwordx4 v[8:11], v12, {sr(S_WS,4)}, s{sT0} offen sc1"); VM.push("clr")
        e(f"buffer_store_dwordx4 v[8:11], v12, {sr(S_WS,4)}, s{sT0} offen offset:1024 sc1"); VM.push("clr")
        e(f"v_lshrrev_b32 v18, 4, v{vL}")
        e(f"v_and_b32 v18, 2, v18")
        e(f"s_sub_u32 s{sT3}, s2, 1")
        e(f"v_add_u32 v18, s{sT3}, v18")
        e(f"v_mov_b32 v19, 1")
        e(f"v_mov_b32 v20, s2")
    stouch_base(1, 256)
    bars = [0] + T0["bars"]
    assert len(bars) >= 5
    for i, kc in enumerate(bars):
        if P["ext"]:
            done[0] = kc-1
            for u in range(4):
                xfill()
                if xq: VM.wait_first(("x", kc))
            xfill()
        VM.wait(("x", kc))
        if i == 1: VM.wait("clr")
        if i == 0: stamp(1)
        if i == len(bars)-1:
            if P["exch"]:
                with only_wave(0):
                    e("s_waitcnt vmcnt(0)")
                    e(f"s_mov_b64 exec, {sr(sNB,2)}")
                    e(f"s_mov_b32 s{sSPIN}, 0x8000")
                    lab("L_fpoll")
                    e(f"v_cmp_ne_u32 vcc, 0, v22")
                    e("s_nop 1")
                    e("s_cmp_eq_u64 vcc, exec")
                    e("s_cbranch_scc0 L_frepoll")
                    lab("L_fpolled")
                    e("s_mov_b64 exec, -1")
                outl.append(f"""L_frepoll:
    s_sub_u32 s{sSPIN}, s{sSPIN}, 1
    s_cbranch_scc1 L_fpolled
    buffer_load_ubyte v22, v18, {sr(S_DBG,4)}, 0 offen sc1
    s_waitcnt vmcnt(0)
    s_branch L_fpoll""")
        e("s_barrier")
        if i == len(bars)-1: stamp(2)
        if i == 1 and P["exch"]:
            with only_wave(0):
                if P["sflag"]:
                    e(f"s_and_b32 s98, s2, 3")
                    e(f"s_lshl_b32 s98, s98, 3")
                    e(f"s_lshl_b32 s98, 1, s98")
                    e(f"s_and_b32 s99, s2, 0xfc")
                    e(f"s_atomic_or s98, {sr(S_DBG,2)}, s99")
                else:
                    e("s_mov_b64 exec, 1")
                    e(f"buffer_store_byte v19, v20, {sr(S_DBG,4)}, 0 offen sc1")
                    e("s_mov_b64 exec, -1")
        if i < 4 and P["tch"] & 2:
            for k in range(5): stouch(1, 5*i+k)
        if i == 4:
            e(f"s_lshl_b32 s{sT2}, s{sIDX}, 2")
            e(f"s_add_u32 s{sT2}, s{sT2}, s{sPR}")
            e(f"s_lshl_b32 s{sT2}, s{sT2}, 7")
            e(f"s_buffer_load_dwordx2 {sr(sDUM,2)}, {sr(S_DW,4)}, s{sT2} offset:60")
        if i == len(bars)-2 and P["exch"]:
            with only_wave(0):
                e(f"s_mov_b64 exec, {sr(sNB,2)}")
                e(f"buffer_load_ubyte v22, v18, {sr(S_DBG,4)}, 0 offen sc1")
                e("s_mov_b64 exec, -1")
    w2_voff(vX, 8)
    e(f"s_lshl_b32 s{sT3}, s{sPR}, 7")
    e("s_waitcnt vmcnt(0) lgkmcnt(0)")
    first_reads(1)
    e("s_barrier")
    VM.set([])
    takeover(1)
    stamp(3)
    call("L_G1")
    stamp(4)
    stouch_base(1, 768)
    e("s_mov_b64 vcc, 0")
    e(f"s_mov_b32 s{sMODE}, 1")
    call("L_E1")
    stamp(7)
    e(f"s_mov_b32 s{sTB}, 0x40000000")
    e(f"v_add_u32 v{vSW}, 0x10000, v{vSW}")
    e("s_mov_b64 vcc, -1")
    e("s_nop 0")
    call("L_E1")
    SWH[0] = 1
    e_rest(1, "c", [], 1)
    e("s_waitcnt lgkmcnt(0)")
    stamp(8)
    e("s_barrier")
    e(f"v_mov_b32 v{vW}, v{vX}")
    g2_addr()
    out_addr(sRB)
    e("s_mov_b64 vcc, 0")
    first_reads(2)
    e("s_barrier")
    VM.set([])
    takeover(2)
    stamp(9)
    gen_G2()
    L.extend(t0_code)
    gen_E1()
    gen_G1()
    for o in outl: L.append(o)
    lab("L_exit")
    e("s_endpgm")

HEAD = f"""; Fused conformer conv module: GEMM1 + GLU + depthwise conv + SiLU + GEMM2, one 128-row tile per workgroup.
; @launch grid=({NWG},1,1) block=(512,1,1) lds=163840
.amdgcn_target "amdgcn-amd-amdhsa--gfx950"
.text
.globl {NAME}_kernel
.p2align 8
.type {NAME}_kernel,@function
"""
TAIL = f"""
.section .rodata,"a"
.p2align 6
.amdhsa_kernel {NAME}_kernel
  .amdhsa_next_free_vgpr 256
  .amdhsa_next_free_sgpr 102
  .amdhsa_accum_offset 256
  .amdhsa_group_segment_fixed_size 0
  .amdhsa_kernarg_size 56
  .amdhsa_user_sgpr_count 2
  .amdhsa_user_sgpr_kernarg_segment_ptr 1
  .amdhsa_system_sgpr_workgroup_id_x 1
.end_amdhsa_kernel
"""
gen_main()
txt = HEAD + "\n".join(L) + TAIL
if out_path is None: out_path = f"cdna_kernels/{NAME}.s"
open(out_path, "w").write(txt)
sys.stderr.write(f"{out_path}: T0 barriers {T0['bars']}\n")
```

```python
import sys

NAME = "standalone__conformer_conv_module__speech"
P = dict(
    stamps=0,
    p0=2,
    xpat="10",
    pace=2,
    exch=1,
    inb=4,
    stflag="sc1",
    sched1="D.Vt.u.Ba.b.m.o.W",
    sched2="D.Vt.u.Ba.b.cm.do.",
    sched0="D.Vt.u.Ba.b.X.mo.",
    hb=3,
    ypos=620,
    xflag="nt", ext=0, pro=1, x1n=0, xd=5, xd0=5, gprio=2, s1g=4, s1pos=340, hpos=1030, gahead=3, gentle=1, tsp=6, tlag=10, st2=1, noast=0, sflag=1,
    tland=48,
    tch=15, tflag="", t0st=0,
    nodma=0, bench=0, probe=-2, pgrp=0, plen=10000,
)
out_path = None
for a in sys.argv[1:]:
    if "=" in a:
        k, v = a.split("=", 1)
        assert k in P, k
        P[k] = int(v) if (v.lstrip("-").isdigit() and not isinstance(P[k], str)) else v
    else:
        out_path = a

NWG = 250
S_X, S_W1, S_W2, S_OUT, S_DW, S_WS, S_DBG = 4, 8, 12, 16, 20, 24, 28
sW, sGRP, sPR, sRB, sXG, sROW, sOFF, sCOL, sC = 32, 33, 34, 35, 36, 37, 38, 39, 40
sMODE = 41
sRET = 42
sQ0 = 44
sQ3 = 46
sNB = 48
sIDX = 50
sU = 51
sT0, sT1, sT2, sT3 = 52, 53, 54, 55
sPC = 56
sSPIN = 58
sXL = 59
sST = 60
sDUM = 94
sTB = 96
vA0, vA1, vB0, vB1, vW, vL, vSW, vX = 0, 1, 2, 3, 4, 5, 6, 7
AF = 8
BB = [32, 64]
SS = 96
ACC = 128

L = []
def e(s): L.append("    " + s)
def lab(s): L.append(s + ":")
def cm(s): L.append("    ; " + s)
def sr(b, n): return f"s[{b}:{b+n-1}]"
def vr(b, n): return f"v[{b}:{b+n-1}]"

class Q:
    def __init__(self, name, mx): self.name, self.mx, self.q = name, mx, []
    def push(self, tag): self.q.append(tag)
    def wait(self, tag):
        if tag not in self.q: return
        i = len(self.q) - 1 - self.q[::-1].index(tag)
        n = min(len(self.q) - 1 - i, self.mx)
        e(f"s_waitcnt {self.name}({n})")
        self.q = self.q[len(self.q)-n:]
    def wait_first(self, tag):
        if tag not in self.q: return
        n = min(len(self.q) - 1 - self.q.index(tag), self.mx)
        e(f"s_waitcnt {self.name}({n})")
        self.q = self.q[len(self.q)-n:]
    def drain(self):
        e(f"s_waitcnt {self.name}(0)"); self.q = []
    def set(self, tags): self.q = list(tags)
LG = Q("lgkmcnt", 15)
VM = Q("vmcnt", 63)

def stamp(i, force=False):
    if P["t0st"] and 4 <= i <= 12 and not force: return
    if P["stamps"] == 1: e(f"s_memrealtime {sr(sST+2*i,2)}")
    if P["stamps"] == 2: e(f"s_memtime {sr(sST+2*i,2)}")

def acc1(ab, F, blk): return ACC + 32*(2*ab+F) + 4*blk
def acc2(tb, F): return ACC + 16*tb + 4*F
def afrag(g, ks): return AF + 8*(g % 3) + 4*ks
def bfrag(buf, f4, ks): return BB[buf] + 8*f4 + 4*ks

def w_m0(kind, slot, always=False):
    if kind == 2: e(f"s_add_u32 m0, s{sRB}, {1024*slot - 64*(slot & 1)}")
    elif slot % 4 == 0 or always: e(f"s_add_u32 m0, s{sRB}, {4096*(slot >> 2)}")
def w_off(kind, tile, slot, col=sCOL):
    ks, m, ab = slot >> 2, (slot >> 1) & 1, slot & 1
    if ab: return
    nx = 0
    if tile == 8: tile, nx = 0, (0 if col != sCOL else 256*kind)
    if kind == 2: e(f"s_add_u32 s{sOFF}, s{col}, {nx + tile*65536 + ks*32768 + m*8192}")
    else: e(f"s_add_u32 s{sOFF}, s{col}, {nx + tile*131072 + ks*65536 + m*6144}")
def w_dma(kind, tile, slot, prep=True, vo=vW):
    ks, m, ab = slot >> 2, (slot >> 1) & 1, slot & 1
    if prep:
        w_m0(kind, slot); w_off(kind, tile, slot)
        if kind == 2 and ab: e("s_nop 0")
    if kind == 1: e(f"buffer_load_dwordx4 v{vo}, {sr(S_W1,4)}, s{sOFF} offen offset:{2048*m+1024*ab} lds")
    else: e(f"buffer_load_dwordx4 v{vo}, {sr(S_W2,4)}, s{sOFF} offen offset:{64*ab} lds")
    VM.push(("w", tile, slot))
def w_read(tile, slot, which=(0, 1)):
    ks, m, ab = slot >> 2, (slot >> 1) & 1, slot & 1
    for F in which:
        d = bfrag(tile & 1, 2*ab+F, ks) + 2*m
        e(f"ds_read_b64_tr_b16 {vr(d,2)}, v{vB0+F} offset:{1024*slot}")
        LG.push(("wr", tile, slot))
def x_read(g, ks):
    N, blk = g >> 3, g & 7
    e(f"ds_read_b128 {vr(afrag(g,ks),4)}, v{vA0+ks} offset:{(N&3)*16384+blk*2048}")
    LG.push(("a", g))
def s_read(g, ks, which=(0, 1)):
    N, tb = g >> 3, g & 7
    for m in which:
        e(f"ds_read_b64_tr_b16 {vr(afrag(g,ks)+2*m,2)}, v{vA0} offset:{(N&3)*16384+ks*8192+tb*1024+m*256}")
        LG.push(("a", g))
def x_dma(kc, u):
    e(f"s_add_u32 m0, s{sXL}, {kc*16384 + u*4096}")
    e(f"s_add_u32 s{sT0}, s{sXG}, {kc*128 + u*8192}")
    e(f"buffer_load_dwordx4 v{vX}, {sr(S_X,4)}, s{sT0} offen {P['xflag']} lds")
    VM.push(("x", kc))
SWH = [0]
def s_write(dst, idx):
    F, v = idx >> 2, idx & 3
    if SWH[0] != (v & 1):
        e(f"v_xor_b32 v{vSW}, 16, v{vSW}"); SWH[0] ^= 1
    e(f"ds_write_b128 v{vSW}, {vr(dst(F,4*v),4)} offset:{1024*(v>>1)+512*F}")
    LG.push(("sw", idx))
def dst_ss(F, p): return SS + 16*F + p
def dst_b(F, p): return ACC + 64 + 32*F + p
SW_ORDER = [0, 2, 4, 6, 1, 3, 5, 7]

def mfma_seq(kind, N, blk):
    g = 8*N + blk
    seq = []
    for f4 in range(4):
        order = (0, 1) if f4 % 2 == 0 else (1, 0)
        for j, ks in enumerate(order):
            A, B = afrag(g, ks), bfrag(N & 1, f4, ks)
            if kind == 1:
                d = acc1(f4 >> 1, f4 & 1, blk); a, b = A, B
            else:
                d = acc2(blk, f4); a, b = B, A
            c = "0" if (N == 0 and j == 0) else vr(d, 4)
            seq.append(f"v_mfma_f32_16x16x32_bf16 {vr(d,4)}, {vr(a,4)}, {vr(b,4)}, {c}")
    return seq

outl = []
def cond_barrier(tag, on):
    e(f"s_cbranch_vcc{'nz' if on else 'z'} L_bar_{tag}")
    lab(f"L_barret_{tag}")
    outl.append(f"L_bar_{tag}:\n    s_barrier\n    s_branch L_barret_{tag}")

def dma_of(g, nxt):
    N, blk = g >> 3, g & 7
    pt, ps = ((N+2, blk-1) if blk >= 1 else (N+1, 7))
    if pt > 8 or g == 0 or (pt == 8 and not nxt): return None
    return pt, ps

T0 = dict(todo=[], published=0, bars=[], phys={}, issue={})
vE0 = SS
sRX = 97
def t0_plan():
    ph, iss = T0["phys"], T0["issue"]
    for s_ in range(8): ph[s_] = s_; ph[8+s_] = 8+s_; ph[16+s_] = s_
    nxt = 24
    for g in range(1, 57):
        p = ph[g-1+8]
        if nxt >= 64:
            if p < 8: iss[g] = 64+p; ph[64+p] = p
            continue
        last = 37 if p < 12 else 29
        if p >= 8 and nxt-8 > last: continue
        ph[nxt] = p; iss[g] = nxt; nxt += 1
    assert sorted(n for n in ph if n >= 64) == list(range(64, 72))
def t0_m0(n):
    p, s_ = T0["phys"][n], n & 7
    imm = 1024*(s_ & 3)
    if p < 8: e(f"s_add_u32 m0, s{sRB}, {(1024*p - imm) & 0xffffffff}")
    else: e(f"s_add_u32 m0, s{sRX}, {((16384 if p < 12 else 0) + 1024*(p & 3) - imm) & 0xffffffff}")
def t0_read(n, F):
    p, tile, slot = T0["phys"][n], n >> 3, n & 7
    ks, m, ab = slot >> 2, (slot >> 1) & 1, slot & 1
    d = bfrag(tile & 1, 2*ab+F, ks) + 2*m
    if p < 8: e(f"ds_read_b64_tr_b16 {vr(d,2)}, v{vB0+F} offset:{1024*p}")
    else: e(f"ds_read_b64_tr_b16 {vr(d,2)}, v{vE0+F} offset:{(16384 if p < 12 else 0) + 1024*(p & 3)}")
    LG.push(("wr", tile, slot))
def t0_dma(n):
    t0_m0(n); w_off(1, n >> 3, n & 6); w_dma(1, n >> 3, n & 7, prep=False)
def g_block(kind, N, blk, var=""):
    g = 8*N + blk
    g2 = g + 2
    t0 = var == "t0"
    nxt = var != "B"
    M = mfma_seq(kind, N, blk)
    pt, pb = ((N+1, blk-1) if blk > 0 else (N, 7))
    LG.wait(("wr", pt, pb)); LG.wait(("a", g))
    def tgt(d):
        return (2, sT3, vX) if (var == "sw" and d[0] == 8) else (kind, sCOL, vW)
    def act(c):
        if t0 and P["ext"] and c in "DmotuXB":
            n, n1 = T0["issue"].get(g), T0["issue"].get(g+1)
            if c == "D":
                if n is not None: w_dma(1, n >> 3, n & 7, prep=False)
                if g == 56: e("s_setprio 3")
            elif c == "m":
                if n1 is not None: t0_m0(n1)
            elif c == "o":
                if n1 is not None: w_off(1, n1 >> 3, n1 & 6)
            elif c in "tu":
                if N+1 <= 7: t0_read(g+8, "tu".index(c))
            elif c == "B" and g2 < 64 and blk == 6:
                e("s_barrier")
                if N == 3:
                    e(f"v_add_u32 v{vA0}, 0x10000, v{vA0}")
                    e(f"v_add_u32 v{vA1}, 0x10000, v{vA1}")
            return
        if c == "D":
            d = dma_of(g, nxt)
            if d and not P["nodma"]: w_dma(tgt(d)[0], *d, prep=False, vo=tgt(d)[2])
            if var == "sw" and g == 32: e("s_barrier")
            if N == 7 and blk == 0: e("s_setprio 3")
            if N == 7 and blk == P["hb"] and nxt:
                VM.drain(); e("s_barrier")
        elif c == "m":
            d = dma_of(g+1, nxt)
            if d: w_m0(tgt(d)[0], d[1], t0)
        elif c == "o":
            d = dma_of(g+1, nxt)
            if d: w_off(tgt(d)[0], *d, col=tgt(d)[1])
        elif c == "V":
            if N+1 <= 7: VM.wait(("w", N+1, blk))
        elif c in "tu":
            if N+1 <= 7: w_read(N+1, blk, ("tu".index(c),))
        elif c == "W":
            if var == "sw" and N in (4, 5) and blk % 2 == 1: s_write(dst_ss, SW_ORDER[(g-32)//2])
        elif c == "X":
            if T0["todo"] and P["xpat"][g % len(P["xpat"])] != "0":
                for _ in range(int(P["xpat"][g % len(P["xpat"])])):
                    if T0["todo"]: x_dma(*T0["todo"].pop(0))
        elif c == "B":
            if g2 < 64 and blk == 6:
                if t0 and T0["published"] < N+1:
                    assert all(kc > N+1 for kc, _ in T0["todo"]), "x chunk issued too late"
                    VM.wait(("x", N+1))
                    c2 = N+1
                    while c2+1 <= 7 and c2+1 >= P["p0"] and ("x", c2+1) not in VM.q and all(kc > c2+1 for kc, _ in T0["todo"]): c2 += 1
                    T0["bars"].append(N+1); T0["published"] = c2
                    e("s_barrier")
                if kind == 2 and N == 5: cond_barrier("s2", 1)
                if N == 3:
                    e(f"v_add_u32 v{vA0}, 0x10000, v{vA0}")
                    if kind == 1: e(f"v_add_u32 v{vA1}, 0x10000, v{vA1}")
            if kind == 2 and g == P["s1g"]: cond_barrier("s1", 1)
            if kind == 2 and g == 8: cond_barrier("z", 0)
        elif c in "abcd":
            if g2 < 64:
                i = "abcd".index(c)
                if kind == 1:
                    if i < 2: x_read(g2, i)
                else: s_read(g2, i >> 1, (i & 1,))
    gaps = P["sched0" if t0 else "sched1" if kind == 1 else "sched2"].split(".")
    assert len(gaps) == 8
    for i in range(8):
        e(M[i])
        for c in gaps[i]: act(c)

def g_entry_state(kind):
    VM.set([("w", 1, s) for s in range(8)])
    LG.set([("a", 0)]*(2*kind) + [("a", 1)]*(2*kind))

def gen_G1():
    lab("L_G1")
    g_entry_state(1)
    e(f"s_setprio {P['gprio']}")
    for N in range(4):
        lab(f"L_G1_step{N}")
        for b in range(8): g_block(1, N, b)
    e(f"s_cmp_eq_u32 s{sMODE}, 1")
    e("s_cbranch_scc1 L_G1_sw")
    st = (list(LG.q), list(VM.q))
    for var in ("", "sw"):
        if var: lab("L_G1_sw")
        LG.set(st[0]); VM.set(st[1]); SWH[0] = 0
        for N in range(4, 8):
            if not var: lab(f"L_G1_step{N}")
            for b in range(8):
                if not var and N == 7 and b == 1: lab("L_G1_blk57")
                g_block(1, N, b, var)
        if not var:
            e(f"v_subrev_u32 v{vA0}, 0x10000, v{vA0}")
            e(f"v_subrev_u32 v{vA1}, 0x10000, v{vA1}")
        e("s_setprio 0")
        e(f"s_setpc_b64 {sr(sRET,2)}")

def gen_G1T0():
    lab("L_G1T0")
    g_entry_state(1)
    e(f"s_setprio {P['gprio']}")
    if P["ext"]:
        t0_plan()
        VM.set([("w", t, s_) for t in (1, 2) for s_ in range(8)])
        for g in range(57):
            g_block(1, g >> 3, g & 7, "t0")
            if P["t0st"] == 1 and g & 7 == 7: stamp(4+(g >> 3), True)
        T0["bars"] = list(range(1, 8))
        e("s_branch L_G1_blk57")
        return
    T0["todo"] = [(kc, u) for kc in range(P["p0"], 8) for u in range(4)]
    N = 0
    while T0["published"] < 7:
        for b in range(8): g_block(1, N, b, "t0")
        if P["t0st"] == 1: stamp(4+N, True)
        N += 1
    e(f"s_branch L_G1_step{N}")

def gen_G2():
    lab("L_G2")
    g_entry_state(2)
    e(f"s_setprio {P['gprio']}")
    for N in range(6):
        for b in range(8): g_block(2, N, b)
    e("s_cbranch_vccz L_G2_B")
    st = (list(LG.q), list(VM.q))
    for var in "AB":
        if var == "B": lab("L_G2_B")
        LG.set(st[0]); VM.set(st[1])
        for N in range(6, 8):
            for b in range(8): g_block(2, N, b, var)
        e("s_setprio 0")
        gen_out(var)

def first_reads(kind):
    rd = x_read if kind == 1 else s_read
    for g in range(2):
        for ks in range(2): rd(g, ks)
def takeover_ops(kind, sp=None):
    sp, lag = (P["tsp"] if sp is None else sp), P["tlag"]
    ops = []
    for s in range(8):
        ops.append((sp*s, lambda s=s: (VM.wait(("w", 0, s)), w_read(0, s, (0,)))))
        ops.append((sp*s+2, lambda s=s: w_read(0, s, (1,))))
        ops.append((lag+sp*s-2, lambda s=s: (w_m0(kind, s), w_off(kind, 1, s))))
        ops.append((lag+sp*s, lambda s=s: (LG.wait(("wr", 0, s)), w_dma(kind, 1, s, prep=False))))
    return ops
def merge(valu, ops):
    ops = sorted(enumerate(ops), key=lambda t: (t[1][0], t[0]))
    pos = 0; k = 0
    for ins in valu:
        while k < len(ops) and ops[k][1][0] <= pos: ops[k][1][1](); k += 1
        e(ins); pos += 2 if ins.startswith(("v_exp", "v_rcp")) else 1
    while k < len(ops): ops[k][1][1](); k += 1
def takeover(kind):
    LG.set([])
    merge([], takeover_ops(kind, 3))
def stouch_base(kind, col):
    e(f"s_lshl_b32 s{sTB}, s{sIDX}, 2")
    e(f"s_add_u32 s{sTB}, s{sTB}, s{sPR}")
    e(f"s_mul_i32 s{sTB}, s{sTB}, {5*(2048 if kind == 1 else 1024)}")
    e(f"s_add_u32 s{sTB}, s{sTB}, {col}")
def stouch(kind, i):
    r, l = i >> 2, i & 3
    off = r*2048 + (l & 1)*128 + (l >> 1)*1024 if kind == 1 else i*128
    S_TCH = S_W1 if kind == 1 else S_W2
    if P["st2"]: e(f"s_buffer_load_dwordx2 {sr(sDUM,2)}, {sr(S_TCH,4)}, s{sTB} offset:{off+60}")
    else: e(f"s_buffer_load_dword s{sDUM}, {sr(S_TCH,4)}, s{sTB} offset:{off}")

EW = 64
EH = 74
ET = 82
EA = 90
EX = 92
def hreg(F, j):
    if j < 0: return EH + 4*F + (j+2)
    if j > 31: return EH + 4*F + 2 + (j-32)
    return ACC + 32*F + j
def breg(F, j): return ACC + 64 + 32*F + j
def glu(els):
    o = []
    for F, j in els: o.append(f"v_mul_f32 v{breg(F,j)}, s{sC}, v{breg(F,j)}")
    for F, j in els: o.append(f"v_exp_f32 v{breg(F,j)}, v{breg(F,j)}")
    for F, j in els: o.append(f"v_add_f32 v{breg(F,j)}, 1.0, v{breg(F,j)}")
    for F, j in els: o.append(f"v_rcp_f32 v{breg(F,j)}, v{breg(F,j)}")
    for F, j in els: o.append(f"v_mul_f32 v{hreg(F,j)}, v{hreg(F,j)}, v{breg(F,j)}")
    return o
EO = AF + 16
EB = AF
def conv_silu(els, dst):
    o = []
    for i, (F, j) in enumerate(els): o.append(f"v_mul_f32 v{EO+i}, v{EW+5*F}, v{hreg(F,j-2)}")
    for t in range(1, 5):
        for i, (F, j) in enumerate(els): o.append(f"v_fmac_f32 v{EO+i}, v{EW+5*F+t}, v{hreg(F,j-2+t)}")
    for i, (F, j) in enumerate(els): o.append(f"v_exp_f32 v{ET+i}, v{EO+i}")
    for i, (F, j) in enumerate(els): o.append(f"v_fma_f32 v{ET+i}, v{ET+i}, s{sC}, s{sC}")
    for i, (F, j) in enumerate(els): o.append(f"v_rcp_f32 v{ET+i}, v{ET+i}")
    for i, (F, j) in enumerate(els): o.append(f"v_mul_f32 v{EO+i}, v{EO+i}, v{ET+i}")
    for i, (F, j) in enumerate(els):
        if j % 2 == 0: o.append(f"v_cvt_pk_bf16_f32 v{dst(F,j//2)}, v{EO+i}, v{EO+i+1}")
    return o
def emit(lst):
    for s in lst: e(s)
def slots(lst): return sum(2 if i.startswith(("v_exp", "v_rcp")) else 1 for i in lst)

BND = [(F, j) for F in range(2) for j in (0, 1, 30, 31)]
def e_stream(var, tag):
    dst = dst_ss if var == 1 else dst_b
    marks = {}
    v = []; ops = []
    v.append(f"v_and_b32 v{EA}, 15, v{vL}")
    v.append(f"v_lshlrev_b32 v{EA+1}, 1, v{EA}")
    v.append(f"v_lshlrev_b32 v{EA}, 4, v{EA}")
    v.append(f"v_lshlrev_b32 v{EB}, 2, v{vL}")
    v += glu(BND)
    p_bnd = slots(v)
    if P["exch"]:
        for F in range(2):
            v.append(f"v_cvt_pk_bf16_f32 v{ET+2}, v{hreg(F,0)}, v{hreg(F,1)}")
            v.append(f"v_cvt_pk_bf16_f32 v{ET+3}, v{hreg(F,30)}, v{hreg(F,31)}")
            v.append(f"v_mov_b32 v{EX+2*F+1}, 1")
            v.append(f"v_cndmask_b32 v{EX+2*F}, v{ET+3}, v{ET+2}, {sr(sQ0,2)}")
        v.append(f"v_add_u32 v{ET+2}, 256, v{EA}")
        v.append(f"v_add_u32 v{ET+4}, 16384, v{EA}")
        v.append(f"v_cndmask_b32 v{ET+3}, v{ET+2}, v{EA}, {sr(sQ0,2)}")
        v.append(f"v_cndmask_b32 v{EA}, v{ET+4}, v{ET+2}, {sr(sQ0,2)}")
        def publish():
            e(f"s_mov_b64 exec, {sr(sNB,2)}")
            e(f"buffer_store_dwordx4 {vr(EX,4)}, v{ET+3}, {sr(S_WS,4)}, s{sT0} offen sc1"); VM.push("pub")
            e("s_mov_b64 exec, -1")
        ops.append((slots(v), publish))
    inner = [[(F, j) for F in range(2) for j in range(j0, j0+4)] for j0 in range(2, 30, 4)]
    GA = P["gahead"]
    for i in range(GA): v += glu(inner[i])
    p_w = slots(v)
    k = 0
    for F in range(2):
        for t in range(5):
            so, off = (sCOL, t*1024+32*F) if t < 4 else (sT2, 32*F)
            ops.append((4 + k*(p_w-70)//10, lambda F=F, t=t, so=so, off=off: (
                e(f"buffer_load_ushort v{EW+5*F+t}, v{EA+1}, {sr(S_DW,4)}, s{so} offen offset:{off}"), VM.push("dw"))))
            k += 1
    ops.append((p_w, lambda: VM.wait("dw")))
    for r in range(EW, EW+10): v.append(f"v_lshlrev_b32 v{r}, 16, v{r}")
    for r in range(EW, EW+10): v.append(f"v_mul_f32 v{r}, s{sC}, v{r}")
    k = 0
    for F in range(2):
        for i in range(2):
            ops.append((p_w+30+40*k, lambda F=F, i=i: e(f"ds_bpermute_b32 v{hreg(F,-2+i)}, v{EB}, v{hreg(F,30+i)} offset:192")))
            ops.append((p_w+50+40*k, lambda F=F, i=i: e(f"ds_bpermute_b32 v{hreg(F,32+i)}, v{EB}, v{hreg(F,i)} offset:64")))
            k += 1
    base = 0
    def inbound():
        if P["exch"]:
            e(f"s_mov_b64 exec, {sr(sNB,2)}")
            e(f"buffer_load_dwordx4 {vr(EX,4)}, v{EA}, {sr(S_WS,4)}, s{sT1} offen sc1")
            e("s_mov_b64 exec, -1")
    for i in range(7):
        if i == P["inb"]:
            v += [f"v_mov_b32 v{EX}, 0", f"v_mov_b32 v{EX+2}, 0"]
            ops.append((slots(v), inbound))
            assert slots(v) < P["hpos"]
        v += conv_silu(inner[i], dst)
        marks[i] = slots(v)
        if i+GA < 7: v += glu(inner[i+GA])
    if var == 1: ops.append((P["s1pos"], lambda: cond_barrier("s1e", 1)))
    if P["tch"] & 4:
        n = 20*var
        for i in range(n): ops.append((9+i*(600//n), lambda i=i: stouch(var, i)))
    if var == 2:
        y = P["ypos"] - base
        ops.append((y, lambda: e("s_barrier")))
        SWH[0] = 0
        for k, i in enumerate(SW_ORDER): ops.append((y+8+30*k, lambda i=i: s_write(dst_ss, i)))
    if P["t0st"] == 2 and var == 1:
        for k in range(7): ops.append((200*k, lambda k=k: stamp(4+k, True)))
    def poll():
        VM.wait("old"); LG.wait("old")
        if not P["exch"]: return
        e(f"s_mov_b64 exec, {sr(sNB,2)}")
        e(f"s_mov_b32 s{sSPIN}, 0x8000")
        lab(f"L_poll{tag}")
        e(f"v_and_b32 v{EA+1}, v{EX+1}, v{EX+3}")
        e(f"v_cmp_eq_u32 vcc, 1, v{EA+1}")
        e("s_nop 1")
        e("s_cmp_eq_u64 vcc, exec")
        e(f"s_cbranch_scc0 L_repoll{tag}")
        lab(f"L_polled{tag}")
        e("s_mov_b64 exec, -1")
        outl.append(f"""L_repoll{tag}:
    s_sub_u32 s{sSPIN}, s{sSPIN}, 1
    s_cbranch_scc1 L_polled{tag}
    buffer_load_dwordx4 {vr(EX,4)}, v{EA}, {sr(S_WS,4)}, s{sT1} offen sc1
    s_waitcnt vmcnt(0)
    s_branch L_poll{tag}""")
    assert slots(v) >= P["hpos"]
    ops.append((slots(v), poll))
    v += etail(dst)
    return v, ops, marks

def e_split(v):
    pos = 0
    for n, ins in enumerate(v):
        if pos >= P["hpos"]: return n, pos
        pos += slots([ins])
def e_head(var):
    VM.set([]); LG.set([])
    e(f"s_add_u32 s{sT2}, s{sCOL}, 4096")
    e(f"s_lshl_b32 s{sT0}, s{sU}, 9")
    e(f"s_lshl_b32 s{sT1}, s2, 13")
    e(f"s_add_u32 s{sT1}, s{sT1}, s{sT0}")
    e(f"s_add_u32 s{sT0}, s{sT1}, 8192")
    v, ops, marks = e_stream(var, "x")
    n, pos = e_split(v)
    merge(v[:n], [o for o in ops if o[0] < pos])
def e_rest(var, tag, extra, swr):
    h = SWH[0]
    v, ops, marks = e_stream(var, tag)
    SWH[0] = h
    n, pos = e_split(v)
    VM.set(["old"]); LG.set(["old"])
    ops = [(p-pos, f) for p, f in ops if p >= pos] + extra
    dst = dst_ss if var == 1 else dst_b
    if swr:
        p0 = max(marks[5]-pos, swr)
        for k, i in enumerate((1, 5, 2, 6)): ops.append((p0+12*k, lambda i=i: s_write(dst, i)))
    merge(v[n:], ops)
    if swr:
        for i in (0, 4, 3, 7): s_write(dst, i)

def etail(dst):
    o = []
    for F in range(2):
        o.append(f"v_lshlrev_b32 v{ET+2*F}, 16, v{EX+2*F}")
        o.append(f"v_and_b32 v{ET+2*F+1}, 0xffff0000, v{EX+2*F}")
    for F in range(2):
        for i in range(2):
            o.append(f"v_cndmask_b32 v{hreg(F,-2+i)}, v{hreg(F,-2+i)}, v{ET+2*F+i}, {sr(sQ0,2)}")
            o.append(f"v_cndmask_b32 v{hreg(F,32+i)}, v{hreg(F,32+i)}, v{ET+2*F+i}, {sr(sQ3,2)}")
    return o + conv_silu(BND, dst)

def gen_E1():
    lab("L_E1")
    e_head(1)
    e(f"s_cbranch_vccnz L_E1_ret")
    outl.append(f"L_E1_ret:\n    s_setpc_b64 {sr(sRET,2)}")
    stamp(5)
    e("s_barrier")
    e("s_setprio 1")
    e(f"s_add_u32 s{sCOL}, s{sCOL}, 512")
    e(f"s_add_u32 s{sU}, s{sU}, 8")
    e_rest(1, "a", takeover_ops(1) + [(70+4*k, lambda k=k: x_read(k >> 1, k & 1)) for k in range(4)], 0)
    stamp(11)

def call(l): e(f"s_call_b64 {sr(sRET,2)}, {l}")

def g1_addr():
    e(f"v_lshrrev_b32 v{vB0}, 2, v{vL}")
    e(f"v_lshlrev_b32 v{vB0}, 6, v{vB0}")
    e(f"v_bfe_u32 v{vB1}, v{vL}, 4, 1")
    e(f"v_lshl_add_u32 v{vB0}, v{vB1}, 5, v{vB0}")
    e(f"v_and_b32 v{vB1}, 3, v{vL}")
    e(f"v_lshl_add_u32 v{vB0}, v{vB1}, 3, v{vB0}")
    e(f"v_add_u32 v{vB0}, s{sRB}, v{vB0}")
    e(f"v_xor_b32 v{vB1}, 32, v{vB0}")
    e(f"v_lshrrev_b32 v{vSW}, 4, v{vL}")
    e(f"v_bfe_u32 v{vA1}, v{vL}, 1, 3")
    e(f"v_xor_b32 v{vA1}, v{vA1}, v{vSW}")
    e(f"v_lshlrev_b32 v{vA1}, 4, v{vA1}")
    e(f"v_and_b32 v{vA0}, 15, v{vL}")
    e(f"v_lshl_add_u32 v{vA0}, v{vA0}, 7, v{vA1}")
    e(f"v_xor_b32 v{vA1}, 64, v{vA0}")
    e(f"v_lshlrev_b32 v{vSW}, 6, v{vSW}")
    e(f"v_and_or_b32 v{vSW}, v{vL}, 15, v{vSW}")
    e(f"v_lshlrev_b32 v{vSW}, 5, v{vSW}")
    e(f"v_bfe_u32 v9, v{vL}, 2, 1")
    e(f"v_lshl_add_u32 v{vSW}, v9, 4, v{vSW}")
    e(f"s_lshl_b32 s{sT2}, s{sW}, 13")
    e(f"v_add_u32 v{vSW}, s{sT2}, v{vSW}")
def w2_voff(d, t):
    e(f"v_and_b32 v{d}, 0x30, v{vW}")
    e(f"v_lshrrev_b32 v{t}, 5, v{vL}")
    e(f"v_lshl_add_u32 v{d}, v{t}, 14, v{d}")
    e(f"v_bfe_u32 v{t}, v{vL}, 2, 3")
    e(f"v_lshl_add_u32 v{d}, v{t}, 10, v{d}")
def g2_addr():
    e(f"s_lshl_b32 s{sCOL}, s{sW}, 7")
    g2_addr_v()
def g2_addr_v():
    e(f"v_lshrrev_b32 v{vA0}, 5, v{vL}")
    e(f"v_lshlrev_b32 v{vA0}, 6, v{vA0}")
    e(f"v_and_or_b32 v{vA0}, v{vL}, 31, v{vA0}")
    e(f"v_lshlrev_b32 v{vA0}, 3, v{vA0}")
    e(f"v_and_b32 v{vA1}, 16, v{vL}")
    e(f"v_xor_b32 v{vA0}, v{vA0}, v{vA1}")

OW, OR, OG = SS, SS+4, SS+5
def out_addr(stg):
    t = SS+6
    e(f"v_and_b32 v{OW}, 15, v{vL}")
    e(f"v_lshrrev_b32 v{t}, 5, v{vL}")
    e(f"v_xor_b32 v{t}, v{t}, v{OW}")
    e(f"v_and_b32 v{t}, 7, v{t}")
    e(f"v_lshlrev_b32 v{t}, 4, v{t}")
    e(f"v_lshl_add_u32 v{OW}, v{OW}, 7, v{t}")
    e(f"v_bfe_u32 v{t}, v{vL}, 4, 1")
    e(f"v_lshl_add_u32 v{OW}, v{t}, 3, v{OW}")
    e(f"v_add_u32 v{OW}, s{stg}, v{OW}")
    for F in range(1, 4): e(f"v_xor_b32 v{OW+F}, {32*F}, v{OW}")
    e(f"v_lshrrev_b32 v{OG}, 3, v{vL}")
    e(f"v_xor_b32 v{OR}, v{OG}, v{vL}")
    e(f"v_and_b32 v{OR}, 7, v{OR}")
    e(f"v_lshlrev_b32 v{OR}, 4, v{OR}")
    e(f"v_lshl_add_u32 v{OR}, v{OG}, 7, v{OR}")
    e(f"v_add_u32 v{OR}, s{stg}, v{OR}")
    e(f"v_and_b32 v{t}, 7, v{vL}")
    e(f"v_lshlrev_b32 v{t}, 4, v{t}")
    e(f"v_lshl_add_u32 v{OG}, v{OG}, 10, v{t}")

def gen_out(var):
    LG.set([]); VM.set([])
    stamp(10)
    e(f"s_add_u32 s{sOFF}, s{sROW}, s{sCOL}")
    def cvt(tb):
        for F in range(4):
            a = acc2(tb, F)
            e(f"v_cvt_pk_bf16_f32 v{a}, v{a}, v{a+1}")
            e(f"v_cvt_pk_bf16_f32 v{a+1}, v{a+2}, v{a+3}")
    def stage(r):
        for t2 in range(2):
            for F in range(4):
                e(f"ds_write_b64 v{OW+F}, {vr(acc2(2*r+t2,F),2)} offset:{2048*t2}"); LG.push("ow")
        for i in range(4):
            e(f"ds_read_b128 {vr(8+16*r+4*i,4)}, v{OR} offset:{1024*i}"); LG.push(("or", r, i))
    def store(r, paced):
        for i in range(4):
            LG.wait(("or", r, i))
            if not (paced and P["noast"]): e(f"buffer_store_dwordx4 {vr(8+16*r+4*i,4)}, v{OG}, {sr(S_OUT,4)}, s{sOFF} offen {P['stflag']}")
            e(f"s_add_u32 s{sOFF}, s{sOFF}, 8192")
            if paced and P["pace"]: e(f"s_waitcnt vmcnt({P['pace']-1})")
    if var == "A":
        e(f"s_lshl_b32 s{sT2}, s{sPR}, 12")
        out_addr(sT2)
        for tb in range(8): cvt(tb)
        e("s_barrier")
        stamp(12)
        if P["gentle"]:
            for tb in range(8):
                for F in range(4):
                    e(f"ds_write_b64 v{OW+F}, {vr(acc2(tb,F),2)} offset:{2048*(tb&1)}")
                    if F % P["gentle"] == P["gentle"]-1: e("s_waitcnt lgkmcnt(0)")
                for i in range(2):
                    e(f"ds_read_b128 {vr(8+8*tb+4*i,4)}, v{OR} offset:{2048*(tb&1)+1024*i}")
                    e("s_waitcnt lgkmcnt(0)")
                    if P["pace"]: e(f"s_waitcnt vmcnt({P['pace']-1})")
                    if not P["noast"]: e(f"buffer_store_dwordx4 {vr(8+8*tb+4*i,4)}, v{OG}, {sr(S_OUT,4)}, s{sOFF} offen {P['stflag']}")
                    e(f"s_add_u32 s{sOFF}, s{sOFF}, 8192")
        else:
          for r in range(4):
            if P["noast"] < 2: stage(r); store(r, True)
        e("s_branch L_end")
        return
    cvt(0); cvt(1); stage(0)
    for r in range(4):
        if r < 3: cvt(2*r+2); cvt(2*r+3)
        store(r, False)
        if r < 3: stage(r+1)
    lab("L_end")
    if P["stamps"]:
        stamp(13)
        e("s_waitcnt vmcnt(0)")
        stamp(14)
        e(f"s_memtime {sr(sST+2*15,2)}")
        e("s_waitcnt lgkmcnt(0)")
        e(f"s_sub_u32 s{sST+30}, s{sST+30}, s{sST+32}")
        if P["probe"] >= -1:
            e(f"s_add_u32 s{sT1}, s{sST}, {P['plen']}")
            if P["probe"] >= 0:
                e(f"s_add_u32 s{sT2}, s{sST+2*P['probe']}, {P['plen']}")
                e(f"s_cmp_eq_u32 s{sGRP}, {P['pgrp']}")
                e(f"s_cselect_b32 s{sT1}, s{sT2}, s{sT1}")
            lab("L_probe")
            e(f"s_memrealtime {sr(sPC,2)}")
            e("s_waitcnt lgkmcnt(0)")
            e(f"s_sub_u32 s{sT2}, s{sPC}, s{sT1}")
            e(f"s_cmp_lt_i32 s{sT2}, 0")
            e("s_cbranch_scc1 L_probe")
            e("s_endpgm")
        for i in range(16): e(f"v_mov_b32 v{8+i}, s{sST+2*i}")
        e(f"s_lshl_b32 s{sT0}, s2, 3")
        e(f"s_add_u32 s{sT0}, s{sT0}, s{sW}")
        e(f"s_lshl_b32 s{sT0}, s{sT0}, 6")
        e(f"s_add_u32 s{sT0}, s{sT0}, 0x400000")
        e("v_mov_b32 v0, 0")
        e("s_mov_b64 exec, 1")
        for i in range(4):
            e(f"buffer_store_dwordx4 {vr(8+4*i,4)}, v0, {sr(S_WS,4)}, s{sT0} offen offset:{16*i}")
    e("s_endpgm")

ntouch = [0]
def touch(srd, vreg, shift, base, dst):
    ntouch[0] += 1
    e(f"s_lshl_b32 s{sT2}, s{sIDX}, {shift}")
    e(f"s_add_u32 s{sT2}, s{sT2}, {base}")
    e(f"buffer_load_dword v{dst}, v{vreg}, {sr(srd,4)}, s{sT2} offen {P['tflag']}")
    e(f"s_cmp_lg_u32 s{sIDX}, 30")
    e(f"s_cbranch_scc1 L_touch{ntouch[0]}")
    e(f"s_add_u32 s{sT2}, s{sT2}, {1 << shift}")
    e(f"buffer_load_dword v{dst}, v{vreg}, {sr(srd,4)}, s{sT2} offen {P['tflag']}")
    lab(f"L_touch{ntouch[0]}")
def touch_addr1(v, t):
    e(f"v_lshrrev_b32 v{v}, 1, v{vL}")
    e(f"v_lshlrev_b32 v{v}, 10, v{v}")
    e(f"v_and_b32 v{t}, 1, v{vL}")
    e(f"v_lshl_add_u32 v{v}, v{t}, 7, v{v}")
def touch_addr2(v, t):
    e(f"v_lshrrev_b32 v{v}, 2, v{vL}")
    e(f"v_lshlrev_b32 v{v}, 10, v{v}")
    e(f"v_and_b32 v{t}, 3, v{vL}")
    e(f"v_lshl_add_u32 v{v}, v{t}, 7, v{v}")
nonly = [0]
class only_wave:
    def __init__(self, pr): self.pr = pr
    def __enter__(self):
        nonly[0] += 1; self.l = f"L_only{nonly[0]}"
        e(f"s_cmp_eq_u32 s{sPR}, {self.pr}"); e(f"s_cbranch_scc0 {self.l}")
    def __exit__(self, *a): lab(self.l)

def gen_main():
    global L
    main = L; L = []; gen_G1T0(); t0_code = L; L = main

    lab(f"{NAME}_kernel")
    e(f"s_cmp_ge_u32 s2, {NWG}")
    e("s_cbranch_scc1 L_exit")
    e(f"s_load_dwordx4 s[4:7], s[0:1], 0")
    e(f"s_load_dwordx4 s[12:15], s[0:1], 16")
    e(f"s_load_dwordx4 s[16:19], s[0:1], 32")
    e(f"s_load_dwordx2 s[24:25], s[0:1], 48")
    stamp(0)
    if P["stamps"]: e(f"s_memtime {sr(sST+32,2)}")
    e(f"v_lshrrev_b32 v8, 6, v0")
    e(f"v_and_b32 v{vL}, 63, v0")
    e(f"v_readfirstlane_b32 s{sW}, v8")
    e(f"s_mov_b32 s{sC}, 0xbfb8aa3b")
    e(f"s_lshr_b32 s{sIDX}, s2, 3")
    e(f"s_lshl_b32 s{sROW}, s2, 17")
    e(f"s_lshr_b32 s{sGRP}, s{sW}, 2")
    e(f"s_and_b32 s{sPR}, s{sW}, 3")
    e(f"s_lshl_b32 s{sRB}, s{sPR}, 13")
    e(f"s_add_u32 s{sRB}, s{sRB}, 131072")
    e(f"s_lshl_b32 s{sCOL}, s{sW}, 6")
    e(f"s_mov_b32 s{sU}, s{sW}")
    e(f"s_mov_b32 s{sMODE}, 0")
    e(f"s_mov_b32 s{sQ0}, 0xffff")
    e(f"s_mov_b32 s{sQ0+1}, 0")
    e(f"s_mov_b32 s{sQ3}, 0")
    e(f"s_mov_b32 s{sQ3+1}, 0xffff0000")
    e(f"s_cmp_ge_u32 s2, 125")
    e(f"s_cselect_b32 s{sT0}, 125, 0")
    e(f"s_sub_u32 s{sT0}, s2, s{sT0}")
    e(f"s_cmp_lg_u32 s{sT0}, 0")
    e(f"s_cselect_b32 s{sNB}, 0xffff, 0")
    e(f"s_cmp_lg_u32 s{sT0}, 124")
    e(f"s_cselect_b32 s{sNB+1}, 0xffff0000, 0")
    e(f"v_lshrrev_b32 v8, 4, v{vL}")
    e(f"v_bfe_u32 v9, v{vL}, 2, 2")
    e(f"v_lshl_add_u32 v{vW}, v8, 3, v9")
    e(f"v_lshlrev_b32 v{vW}, 11, v{vW}")
    e(f"v_lshlrev_b32 v9, 1, v8")
    e(f"v_xor_b32 v9, v9, v{vL}")
    e(f"v_and_b32 v9, 3, v9")
    e(f"v_lshl_add_u32 v{vW}, v9, 4, v{vW}")
    e(f"s_and_b32 s{sT0}, s{sPR}, 1")
    e(f"s_lshl_b32 s{sT1}, s{sT0}, 2")
    e(f"v_xor_b32 v{vX}, v8, v{vL}")
    e(f"v_xor_b32 v{vX}, s{sT1}, v{vX}")
    e(f"v_and_b32 v{vX}, 7, v{vX}")
    e(f"v_lshlrev_b32 v{vX}, 4, v{vX}")
    e(f"v_lshrrev_b32 v9, 5, v{vL}")
    e(f"v_lshl_add_u32 v{vX}, v9, 15, v{vX}")
    e(f"v_bfe_u32 v9, v{vL}, 3, 2")
    e(f"v_lshl_add_u32 v{vX}, v9, 10, v{vX}")
    e(f"s_lshl_b32 s{sT0}, s{sT0}, 16")
    e(f"s_lshr_b32 s{sT1}, s{sPR}, 1")
    e(f"s_lshl_b32 s{sT1}, s{sT1}, 12")
    e(f"s_add_u32 s{sT0}, s{sT0}, s{sT1}")
    e(f"s_add_u32 s{sXG}, s{sT0}, s{sROW}")
    e(f"s_lshl_b32 s{sXL}, s{sPR}, 10")
    if not P["pro"]: g1_addr()
    touch_addr1(15, 14)
    e("s_waitcnt lgkmcnt(0)")
    if P["t0st"] == 3: stamp(4, True)
    e("s_mov_b32 s8, s6"); e("s_mov_b32 s9, s7")
    def srd(b, n):
        e(f"s_mov_b32 s{b+2}, {n}"); e(f"s_mov_b32 s{b+3}, 0x20000")
    srd(S_X, 32768000); srd(S_W1, 1048576)
    def late_srds():
        e("s_mov_b32 s20, s12"); e("s_mov_b32 s21, s13")
        e("s_mov_b32 s12, s14"); e("s_mov_b32 s13, s15")
        e("s_mov_b32 s28, s18"); e("s_mov_b32 s29, s19")
        srd(S_W2, 524288); srd(S_OUT, 32768000); srd(S_DW, 5120)
        srd(S_WS, 0x800000 if P["stamps"] else 252*8192); srd(S_DBG, 256)
    e(f"s_cmp_eq_u32 s{sGRP}, 1")
    e("s_cbranch_scc1 L_B")

    if P["bench"]:
        if P["pro"]: g1_addr()
        late_srds()
        touch_addr2(16, 14)
        e(f"s_lshl_b32 s{sT3}, s{sPR}, 8")
        touch(S_W1, 15, 15, f"s{sT3}", 10)
        touch(S_W2, 16, 14, 0, 10)
        for kc in range(8):
            for u in range(4): x_dma(kc, u)
        e("s_waitcnt vmcnt(0)")
        e("s_barrier")
        for rep in range(3):
            VM.set([]); first_reads(1); takeover(1)
            stamp(1+2*rep); call("L_G1"); stamp(2+2*rep)
            e(f"s_add_u32 s{sCOL}, s{sCOL}, 256")
        w2_voff(vW, 8); g2_addr(); out_addr(sRB)
        VM.set([]); first_reads(2); takeover(2)
        e("s_mov_b64 vcc, 0")
        stamp(9)
        e("s_branch L_G2")
    cm("group A")
    VM.set([])
    if P["pro"]:
        g1_addr(); late_srds()
        if P["pro"] == 1: e("s_barrier")
    for s in range(8): w_dma(1, 0, s)
    if P["t0st"] == 3: stamp(5, True)
    if not P["pro"]: late_srds()
    if P["ext"]:
        e(f"s_lshl_b32 s{sRX}, s{sPR}, 12")
        e(f"s_add_u32 s{sRX}, s{sRX}, 98304")
        e(f"s_sub_u32 s{sT0}, s{sRB}, s{sRX}")
        e(f"v_subrev_u32 v{vE0}, s{sT0}, v{vB0}")
        e(f"v_subrev_u32 v{vE0+1}, s{sT0}, v{vB1}")
        for s in range(8): t0_dma(8+s)
        LG.set([])
        for s in range(8):
            VM.wait(("w", 0, s))
            if P["t0st"] == 3 and s in (0, 7): stamp(6 if s == 0 else 7, True)
            w_read(0, s)
            if s >= 2: LG.wait(("wr", 0, s-2)); t0_dma(16+s-2)
        for s in (6, 7): LG.wait(("wr", 0, s)); t0_dma(16+s)
    elif P["t0st"] == 3:
        VM.wait(("w", 0, 0)); stamp(6, True); VM.wait(("w", 0, 7)); stamp(7, True); takeover(1)
    else:
        takeover(1)
    stamp(1)
    e("s_barrier")
    first_reads(1)
    stamp(2)
    call("L_G1T0")
    stamp(3)
    stouch_base(1, 512)
    e("s_mov_b64 vcc, 0")
    call("L_E1")
    stamp(6)
    stouch_base(2, 0)
    w2_voff(vW, vA0)
    g2_addr_v()
    e_head(2)
    e(f"v_add_u32 v{vSW}, 0x10000, v{vSW}")
    e(f"s_lshl_b32 s{sCOL}, s{sW}, 7")
    e("s_waitcnt lgkmcnt(0)")
    stamp(7)
    e("s_barrier")
    e("s_setprio 1")
    e_rest(2, "b", takeover_ops(2) + [(60+6*k, lambda k=k: s_read(k >> 1, k & 1)) for k in range(4)], 90)
    e("s_mov_b64 vcc, -1")
    stamp(9)
    e("s_branch L_G2")

    lab("L_B")
    if P["bench"]: e("s_endpgm")
    VM.set([])
    if P["pro"]:
        e("s_setprio 3")
        with only_wave(0): touch(S_W1, 15, 15, 0, 100)
        for u in range(4): x_dma(0, u)
        for u in range(P["x1n"]): x_dma(1, u)
        if P["pro"] == 1: e("s_barrier")
        if P["t0st"] == 3: stamp(5, True)
        e("s_setprio 0")
        g1_addr()
    else:
        for u in range(4): x_dma(0, u)
        with only_wave(0): touch(S_W1, 15, 15, 0, 100)
    late_srds()
    if P["tch"] & 16:
        touch_addr2(16, 14)
        with only_wave(1): touch(S_W1, 15, 15, 256, 100)
        with only_wave(2): touch(S_W1, 15, 15, 512, 100); touch(S_W2, 16, 14, 0, 100)
        with only_wave(3): touch(S_W1, 15, 15, 768, 100); touch(S_W2, 16, 14, 512, 100)
    with only_wave(1):
        e(f"s_getpc_b64 {sr(sPC,2)}")
        lab("L_pc")
        e(f"s_and_b32 s{sT0}, s{sIDX}, 7")
        e(f"s_lshl_b32 s{sT0}, s{sT0}, 13")
        e(f"v_lshl_add_u32 v8, v{vL}, 7, s{sT0}")
        e(f"v_min_u32 v8, L_exit-L_pc, v8")
        e(f"global_load_dword v100, v8, {sr(sPC,2)}")
    xq = [(kc, u) for kc in range(1, 8) for u in range(4)]
    if P["ext"]:
        done = [-1]
        def xfill(lim=None):
            while xq and sum(1 for t in VM.q if t[0] == "x") < (lim or P["xd"]) and (xq[0][0] < 6 or done[0] >= xq[0][0]-2):
                x_dma(*xq.pop(0))
        xfill(P["xd0"])
    else:
        for kc in range(1, P["p0"]):
            for u in range(4):
                if not (P["pro"] and kc == 1 and u < P["x1n"]): x_dma(kc, u)
    if P["exch"]:
        cm("clear this workgroup's outbound hand-off slots (2 KB per wave)")
        for r in range(8, 12): e(f"v_mov_b32 v{r}, 0")
        e(f"v_lshlrev_b32 v12, 4, v{vL}")
        e(f"s_lshl_b32 s{sT0}, s2, 13")
        e(f"s_lshl_b32 s{sT1}, s{sPR}, 11")
        e(f"s_add_u32 s{sT0}, s{sT0}, s{sT1}")
        e(f"s_add_u32 s{sT0}, s{sT0}, 8192")
        e(f"buffer_store_dwordx4 v[8:11], v12, {sr(S_WS,4)}, s{sT0} offen sc1"); VM.push("clr")
        e(f"buffer_store_dwordx4 v[8:11], v12, {sr(S_WS,4)}, s{sT0} offen offset:1024 sc1"); VM.push("clr")
        e(f"v_lshrrev_b32 v18, 4, v{vL}")
        e(f"v_and_b32 v18, 2, v18")
        e(f"s_sub_u32 s{sT3}, s2, 1")
        e(f"v_add_u32 v18, s{sT3}, v18")
        e(f"v_mov_b32 v19, 1")
        e(f"v_mov_b32 v20, s2")
    stouch_base(1, 256)
    bars = [0] + T0["bars"]
    assert len(bars) >= 5
    for i, kc in enumerate(bars):
        if P["ext"]:
            done[0] = kc-1
            for u in range(4):
                xfill()
                if xq: VM.wait_first(("x", kc))
            xfill()
        VM.wait(("x", kc))
        if i == 1: VM.wait("clr")
        if i == 0: stamp(1)
        if i == len(bars)-1:
            if P["exch"]:
                with only_wave(0):
                    e("s_waitcnt vmcnt(0)")
                    e(f"s_mov_b64 exec, {sr(sNB,2)}")
                    e(f"s_mov_b32 s{sSPIN}, 0x8000")
                    lab("L_fpoll")
                    e(f"v_cmp_ne_u32 vcc, 0, v22")
                    e("s_nop 1")
                    e("s_cmp_eq_u64 vcc, exec")
                    e("s_cbranch_scc0 L_frepoll")
                    lab("L_fpolled")
                    e("s_mov_b64 exec, -1")
                outl.append(f"""L_frepoll:
    s_sub_u32 s{sSPIN}, s{sSPIN}, 1
    s_cbranch_scc1 L_fpolled
    buffer_load_ubyte v22, v18, {sr(S_DBG,4)}, 0 offen sc1
    s_waitcnt vmcnt(0)
    s_branch L_fpoll""")
        e("s_barrier")
        if i == len(bars)-1: stamp(2)
        if i == 1 and P["exch"]:
            with only_wave(0):
                if P["sflag"]:
                    e(f"s_and_b32 s98, s2, 3")
                    e(f"s_lshl_b32 s98, s98, 3")
                    e(f"s_lshl_b32 s98, 1, s98")
                    e(f"s_and_b32 s99, s2, 0xfc")
                    e(f"s_atomic_or s98, {sr(S_DBG,2)}, s99")
                else:
                    e("s_mov_b64 exec, 1")
                    e(f"buffer_store_byte v19, v20, {sr(S_DBG,4)}, 0 offen sc1")
                    e("s_mov_b64 exec, -1")
        if i < 4 and P["tch"] & 2:
            for k in range(5): stouch(1, 5*i+k)
        if i == 4:
            e(f"s_lshl_b32 s{sT2}, s{sIDX}, 2")
            e(f"s_add_u32 s{sT2}, s{sT2}, s{sPR}")
            e(f"s_lshl_b32 s{sT2}, s{sT2}, 7")
            e(f"s_buffer_load_dwordx2 {sr(sDUM,2)}, {sr(S_DW,4)}, s{sT2} offset:60")
        if i == len(bars)-2 and P["exch"]:
            with only_wave(0):
                e(f"s_mov_b64 exec, {sr(sNB,2)}")
                e(f"buffer_load_ubyte v22, v18, {sr(S_DBG,4)}, 0 offen sc1")
                e("s_mov_b64 exec, -1")
    w2_voff(vX, 8)
    e(f"s_lshl_b32 s{sT3}, s{sPR}, 7")
    e("s_waitcnt vmcnt(0) lgkmcnt(0)")
    first_reads(1)
    e("s_barrier")
    VM.set([])
    takeover(1)
    stamp(3)
    call("L_G1")
    stamp(4)
    stouch_base(1, 768)
    e("s_mov_b64 vcc, 0")
    e(f"s_mov_b32 s{sMODE}, 1")
    call("L_E1")
    stamp(7)
    e(f"s_mov_b32 s{sTB}, 0x40000000")
    e(f"v_add_u32 v{vSW}, 0x10000, v{vSW}")
    e("s_mov_b64 vcc, -1")
    e("s_nop 0")
    call("L_E1")
    SWH[0] = 1
    e_rest(1, "c", [], 1)
    e("s_waitcnt lgkmcnt(0)")
    stamp(8)
    e("s_barrier")
    e(f"v_mov_b32 v{vW}, v{vX}")
    g2_addr()
    out_addr(sRB)
    e("s_mov_b64 vcc, 0")
    first_reads(2)
    e("s_barrier")
    VM.set([])
    takeover(2)
    stamp(9)
    gen_G2()
    L.extend(t0_code)
    gen_E1()
    gen_G1()
    for o in outl: L.append(o)
    lab("L_exit")
    e("s_endpgm")

HEAD = f"""; Fused conformer conv module: GEMM1 + GLU + depthwise conv + SiLU + GEMM2, one 128-row tile per workgroup.
; @launch grid=({NWG},1,1) block=(512,1,1) lds=163840
.amdgcn_target "amdgcn-amd-amdhsa--gfx950"
.text
.globl {NAME}_kernel
.p2align 8
.type {NAME}_kernel,@function
"""
TAIL = f"""
.section .rodata,"a"
.p2align 6
.amdhsa_kernel {NAME}_kernel
  .amdhsa_next_free_vgpr 256
  .amdhsa_next_free_sgpr 102
  .amdhsa_accum_offset 256
  .amdhsa_group_segment_fixed_size 0
  .amdhsa_kernarg_size 56
  .amdhsa_user_sgpr_count 2
  .amdhsa_user_sgpr_kernarg_segment_ptr 1
  .amdhsa_system_sgpr_workgroup_id_x 1
.end_amdhsa_kernel
"""
gen_main()
txt = HEAD + "\n".join(L) + TAIL
if out_path is None: out_path = f"cdna_kernels/{NAME}.s"
open(out_path, "w").write(txt)
sys.stderr.write(f"{out_path}: T0 barriers {T0['bars']}\n")
```

```python
import sys

NAME = "standalone__conformer_conv_module__speech"
P = dict(
    stamps=0,
    p0=2,
    xpat="10",
    pace=2,
    exch=1,
    inb=4,
    stflag="sc1",
    sched1="D.Vt.u.Ba.b.m.o.W",
    sched2="D.Vt.u.Ba.b.cm.do.",
    sched0="D.Vt.u.Ba.b.X.mo.",
    hb=3,
    ypos=620,
    xflag="nt", ext=0, pro=1, x1n=0, xd=5, xd0=5, gprio=2, s1g=4, s1pos=340, hpos=1030, gahead=3, gentle=1, tsp=6, tlag=10, st2=1, noast=0, sflag=1,
    tland=48,
    tch=15, tflag="", t0st=0,
    nodma=0, bench=0, probe=-2, pgrp=0, pwg=-1, plen=10000,
)
out_path = None
for a in sys.argv[1:]:
    if "=" in a:
        k, v = a.split("=", 1)
        assert k in P, k
        P[k] = int(v) if (v.lstrip("-").isdigit() and not isinstance(P[k], str)) else v
    else:
        out_path = a

NWG = 250
S_X, S_W1, S_W2, S_OUT, S_DW, S_WS, S_DBG = 4, 8, 12, 16, 20, 24, 28
sW, sGRP, sPR, sRB, sXG, sROW, sOFF, sCOL, sC = 32, 33, 34, 35, 36, 37, 38, 39, 40
sMODE = 41
sRET = 42
sQ0 = 44
sQ3 = 46
sNB = 48
sIDX = 50
sU = 51
sT0, sT1, sT2, sT3 = 52, 53, 54, 55
sPC = 56
sSPIN = 58
sXL = 59
sST = 60
sDUM = 94
sTB = 96
vA0, vA1, vB0, vB1, vW, vL, vSW, vX = 0, 1, 2, 3, 4, 5, 6, 7
AF = 8
BB = [32, 64]
SS = 96
ACC = 128

L = []
def e(s): L.append("    " + s)
def lab(s): L.append(s + ":")
def cm(s): L.append("    ; " + s)
def sr(b, n): return f"s[{b}:{b+n-1}]"
def vr(b, n): return f"v[{b}:{b+n-1}]"

class Q:
    def __init__(self, name, mx): self.name, self.mx, self.q = name, mx, []
    def push(self, tag): self.q.append(tag)
    def wait(self, tag):
        if tag not in self.q: return
        i = len(self.q) - 1 - self.q[::-1].index(tag)
        n = min(len(self.q) - 1 - i, self.mx)
        e(f"s_waitcnt {self.name}({n})")
        self.q = self.q[len(self.q)-n:]
    def wait_first(self, tag):
        if tag not in self.q: return
        n = min(len(self.q) - 1 - self.q.index(tag), self.mx)
        e(f"s_waitcnt {self.name}({n})")
        self.q = self.q[len(self.q)-n:]
    def drain(self):
        e(f"s_waitcnt {self.name}(0)"); self.q = []
    def set(self, tags): self.q = list(tags)
LG = Q("lgkmcnt", 15)
VM = Q("vmcnt", 63)

def stamp(i, force=False):
    if P["t0st"] and 4 <= i <= 12 and not force: return
    if P["stamps"] == 1: e(f"s_memrealtime {sr(sST+2*i,2)}")
    if P["stamps"] == 2: e(f"s_memtime {sr(sST+2*i,2)}")

def acc1(ab, F, blk): return ACC + 32*(2*ab+F) + 4*blk
def acc2(tb, F): return ACC + 16*tb + 4*F
def afrag(g, ks): return AF + 8*(g % 3) + 4*ks
def bfrag(buf, f4, ks): return BB[buf] + 8*f4 + 4*ks

def w_m0(kind, slot, always=False):
    if kind == 2: e(f"s_add_u32 m0, s{sRB}, {1024*slot - 64*(slot & 1)}")
    elif slot % 4 == 0 or always: e(f"s_add_u32 m0, s{sRB}, {4096*(slot >> 2)}")
def w_off(kind, tile, slot, col=sCOL):
    ks, m, ab = slot >> 2, (slot >> 1) & 1, slot & 1
    if ab: return
    nx = 0
    if tile == 8: tile, nx = 0, (0 if col != sCOL else 256*kind)
    if kind == 2: e(f"s_add_u32 s{sOFF}, s{col}, {nx + tile*65536 + ks*32768 + m*8192}")
    else: e(f"s_add_u32 s{sOFF}, s{col}, {nx + tile*131072 + ks*65536 + m*6144}")
def w_dma(kind, tile, slot, prep=True, vo=vW):
    ks, m, ab = slot >> 2, (slot >> 1) & 1, slot & 1
    if prep:
        w_m0(kind, slot); w_off(kind, tile, slot)
        if kind == 2 and ab: e("s_nop 0")
    if kind == 1: e(f"buffer_load_dwordx4 v{vo}, {sr(S_W1,4)}, s{sOFF} offen offset:{2048*m+1024*ab} lds")
    else: e(f"buffer_load_dwordx4 v{vo}, {sr(S_W2,4)}, s{sOFF} offen offset:{64*ab} lds")
    VM.push(("w", tile, slot))
def w_read(tile, slot, which=(0, 1)):
    ks, m, ab = slot >> 2, (slot >> 1) & 1, slot & 1
    for F in which:
        d = bfrag(tile & 1, 2*ab+F, ks) + 2*m
        e(f"ds_read_b64_tr_b16 {vr(d,2)}, v{vB0+F} offset:{1024*slot}")
        LG.push(("wr", tile, slot))
def x_read(g, ks):
    N, blk = g >> 3, g & 7
    e(f"ds_read_b128 {vr(afrag(g,ks),4)}, v{vA0+ks} offset:{(N&3)*16384+blk*2048}")
    LG.push(("a", g))
def s_read(g, ks, which=(0, 1)):
    N, tb = g >> 3, g & 7
    for m in which:
        e(f"ds_read_b64_tr_b16 {vr(afrag(g,ks)+2*m,2)}, v{vA0} offset:{(N&3)*16384+ks*8192+tb*1024+m*256}")
        LG.push(("a", g))
def x_dma(kc, u):
    e(f"s_add_u32 m0, s{sXL}, {kc*16384 + u*4096}")
    e(f"s_add_u32 s{sT0}, s{sXG}, {kc*128 + u*8192}")
    e(f"buffer_load_dwordx4 v{vX}, {sr(S_X,4)}, s{sT0} offen {P['xflag']} lds")
    VM.push(("x", kc))
SWH = [0]
def s_write(dst, idx):
    F, v = idx >> 2, idx & 3
    if SWH[0] != (v & 1):
        e(f"v_xor_b32 v{vSW}, 16, v{vSW}"); SWH[0] ^= 1
    e(f"ds_write_b128 v{vSW}, {vr(dst(F,4*v),4)} offset:{1024*(v>>1)+512*F}")
    LG.push(("sw", idx))
def dst_ss(F, p): return SS + 16*F + p
def dst_b(F, p): return ACC + 64 + 32*F + p
SW_ORDER = [0, 2, 4, 6, 1, 3, 5, 7]

def mfma_seq(kind, N, blk):
    g = 8*N + blk
    seq = []
    for f4 in range(4):
        order = (0, 1) if f4 % 2 == 0 else (1, 0)
        for j, ks in enumerate(order):
            A, B = afrag(g, ks), bfrag(N & 1, f4, ks)
            if kind == 1:
                d = acc1(f4 >> 1, f4 & 1, blk); a, b = A, B
            else:
                d = acc2(blk, f4); a, b = B, A
            c = "0" if (N == 0 and j == 0) else vr(d, 4)
            seq.append(f"v_mfma_f32_16x16x32_bf16 {vr(d,4)}, {vr(a,4)}, {vr(b,4)}, {c}")
    return seq

outl = []
def cond_barrier(tag, on):
    e(f"s_cbranch_vcc{'nz' if on else 'z'} L_bar_{tag}")
    lab(f"L_barret_{tag}")
    outl.append(f"L_bar_{tag}:\n    s_barrier\n    s_branch L_barret_{tag}")

def dma_of(g, nxt):
    N, blk = g >> 3, g & 7
    pt, ps = ((N+2, blk-1) if blk >= 1 else (N+1, 7))
    if pt > 8 or g == 0 or (pt == 8 and not nxt): return None
    return pt, ps

T0 = dict(todo=[], published=0, bars=[], phys={}, issue={})
vE0 = SS
sRX = 97
def t0_plan():
    ph, iss = T0["phys"], T0["issue"]
    for s_ in range(8): ph[s_] = s_; ph[8+s_] = 8+s_; ph[16+s_] = s_
    nxt = 24
    for g in range(1, 57):
        p = ph[g-1+8]
        if nxt >= 64:
            if p < 8: iss[g] = 64+p; ph[64+p] = p
            continue
        last = 37 if p < 12 else 29
        if p >= 8 and nxt-8 > last: continue
        ph[nxt] = p; iss[g] = nxt; nxt += 1
    assert sorted(n for n in ph if n >= 64) == list(range(64, 72))
def t0_m0(n):
    p, s_ = T0["phys"][n], n & 7
    imm = 1024*(s_ & 3)
    if p < 8: e(f"s_add_u32 m0, s{sRB}, {(1024*p - imm) & 0xffffffff}")
    else: e(f"s_add_u32 m0, s{sRX}, {((16384 if p < 12 else 0) + 1024*(p & 3) - imm) & 0xffffffff}")
def t0_read(n, F):
    p, tile, slot = T0["phys"][n], n >> 3, n & 7
    ks, m, ab = slot >> 2, (slot >> 1) & 1, slot & 1
    d = bfrag(tile & 1, 2*ab+F, ks) + 2*m
    if p < 8: e(f"ds_read_b64_tr_b16 {vr(d,2)}, v{vB0+F} offset:{1024*p}")
    else: e(f"ds_read_b64_tr_b16 {vr(d,2)}, v{vE0+F} offset:{(16384 if p < 12 else 0) + 1024*(p & 3)}")
    LG.push(("wr", tile, slot))
def t0_dma(n):
    t0_m0(n); w_off(1, n >> 3, n & 6); w_dma(1, n >> 3, n & 7, prep=False)
def g_block(kind, N, blk, var=""):
    g = 8*N + blk
    g2 = g + 2
    t0 = var == "t0"
    nxt = var != "B"
    M = mfma_seq(kind, N, blk)
    pt, pb = ((N+1, blk-1) if blk > 0 else (N, 7))
    LG.wait(("wr", pt, pb)); LG.wait(("a", g))
    def tgt(d):
        return (2, sT3, vX) if (var == "sw" and d[0] == 8) else (kind, sCOL, vW)
    def act(c):
        if t0 and P["ext"] and c in "DmotuXB":
            n, n1 = T0["issue"].get(g), T0["issue"].get(g+1)
            if c == "D":
                if n is not None: w_dma(1, n >> 3, n & 7, prep=False)
                if g == 56: e("s_setprio 3")
            elif c == "m":
                if n1 is not None: t0_m0(n1)
            elif c == "o":
                if n1 is not None: w_off(1, n1 >> 3, n1 & 6)
            elif c in "tu":
                if N+1 <= 7: t0_read(g+8, "tu".index(c))
            elif c == "B" and g2 < 64 and blk == 6:
                e("s_barrier")
                if N == 3:
                    e(f"v_add_u32 v{vA0}, 0x10000, v{vA0}")
                    e(f"v_add_u32 v{vA1}, 0x10000, v{vA1}")
            return
        if c == "D":
            d = dma_of(g, nxt)
            if d and not P["nodma"]: w_dma(tgt(d)[0], *d, prep=False, vo=tgt(d)[2])
            if var == "sw" and g == 32: e("s_barrier")
            if N == 7 and blk == 0: e("s_setprio 3")
            if N == 7 and blk == P["hb"] and nxt:
                VM.drain(); e("s_barrier")
        elif c == "m":
            d = dma_of(g+1, nxt)
            if d: w_m0(tgt(d)[0], d[1], t0)
        elif c == "o":
            d = dma_of(g+1, nxt)
            if d: w_off(tgt(d)[0], *d, col=tgt(d)[1])
        elif c == "V":
            if N+1 <= 7: VM.wait(("w", N+1, blk))
        elif c in "tu":
            if N+1 <= 7: w_read(N+1, blk, ("tu".index(c),))
        elif c == "W":
            if var == "sw" and N in (4, 5) and blk % 2 == 1: s_write(dst_ss, SW_ORDER[(g-32)//2])
        elif c == "X":
            if T0["todo"] and P["xpat"][g % len(P["xpat"])] != "0":
                for _ in range(int(P["xpat"][g % len(P["xpat"])])):
                    if T0["todo"]: x_dma(*T0["todo"].pop(0))
        elif c == "B":
            if g2 < 64 and blk == 6:
                if t0 and T0["published"] < N+1:
                    assert all(kc > N+1 for kc, _ in T0["todo"]), "x chunk issued too late"
                    VM.wait(("x", N+1))
                    c2 = N+1
                    while c2+1 <= 7 and c2+1 >= P["p0"] and ("x", c2+1) not in VM.q and all(kc > c2+1 for kc, _ in T0["todo"]): c2 += 1
                    T0["bars"].append(N+1); T0["published"] = c2
                    e("s_barrier")
                if kind == 2 and N == 5: cond_barrier("s2", 1)
                if N == 3:
                    e(f"v_add_u32 v{vA0}, 0x10000, v{vA0}")
                    if kind == 1: e(f"v_add_u32 v{vA1}, 0x10000, v{vA1}")
            if kind == 2 and g == P["s1g"]: cond_barrier("s1", 1)
            if kind == 2 and g == 8: cond_barrier("z", 0)
        elif c in "abcd":
            if g2 < 64:
                i = "abcd".index(c)
                if kind == 1:
                    if i < 2: x_read(g2, i)
                else: s_read(g2, i >> 1, (i & 1,))
    gaps = P["sched0" if t0 else "sched1" if kind == 1 else "sched2"].split(".")
    assert len(gaps) == 8
    for i in range(8):
        e(M[i])
        for c in gaps[i]: act(c)

def g_entry_state(kind):
    VM.set([("w", 1, s) for s in range(8)])
    LG.set([("a", 0)]*(2*kind) + [("a", 1)]*(2*kind))

def gen_G1():
    lab("L_G1")
    g_entry_state(1)
    e(f"s_setprio {P['gprio']}")
    for N in range(4):
        lab(f"L_G1_step{N}")
        for b in range(8): g_block(1, N, b)
    e(f"s_cmp_eq_u32 s{sMODE}, 1")
    e("s_cbranch_scc1 L_G1_sw")
    st = (list(LG.q), list(VM.q))
    for var in ("", "sw"):
        if var: lab("L_G1_sw")
        LG.set(st[0]); VM.set(st[1]); SWH[0] = 0
        for N in range(4, 8):
            if not var: lab(f"L_G1_step{N}")
            for b in range(8):
                if not var and N == 7 and b == 1: lab("L_G1_blk57")
                g_block(1, N, b, var)
        if not var:
            e(f"v_subrev_u32 v{vA0}, 0x10000, v{vA0}")
            e(f"v_subrev_u32 v{vA1}, 0x10000, v{vA1}")
        e("s_setprio 0")
        e(f"s_setpc_b64 {sr(sRET,2)}")

def gen_G1T0():
    lab("L_G1T0")
    g_entry_state(1)
    e(f"s_setprio {P['gprio']}")
    if P["ext"]:
        t0_plan()
        VM.set([("w", t, s_) for t in (1, 2) for s_ in range(8)])
        for g in range(57):
            g_block(1, g >> 3, g & 7, "t0")
            if P["t0st"] == 1 and g & 7 == 7: stamp(4+(g >> 3), True)
        T0["bars"] = list(range(1, 8))
        e("s_branch L_G1_blk57")
        return
    T0["todo"] = [(kc, u) for kc in range(P["p0"], 8) for u in range(4)]
    N = 0
    while T0["published"] < 7:
        for b in range(8): g_block(1, N, b, "t0")
        if P["t0st"] == 1: stamp(4+N, True)
        N += 1
    e(f"s_branch L_G1_step{N}")

def gen_G2():
    lab("L_G2")
    g_entry_state(2)
    e(f"s_setprio {P['gprio']}")
    for N in range(6):
        for b in range(8): g_block(2, N, b)
    e("s_cbranch_vccz L_G2_B")
    st = (list(LG.q), list(VM.q))
    for var in "AB":
        if var == "B": lab("L_G2_B")
        LG.set(st[0]); VM.set(st[1])
        for N in range(6, 8):
            for b in range(8): g_block(2, N, b, var)
        e("s_setprio 0")
        gen_out(var)

def first_reads(kind):
    rd = x_read if kind == 1 else s_read
    for g in range(2):
        for ks in range(2): rd(g, ks)
def takeover_ops(kind, sp=None):
    sp, lag = (P["tsp"] if sp is None else sp), P["tlag"]
    ops = []
    for s in range(8):
        ops.append((sp*s, lambda s=s: (VM.wait(("w", 0, s)), w_read(0, s, (0,)))))
        ops.append((sp*s+2, lambda s=s: w_read(0, s, (1,))))
        ops.append((lag+sp*s-2, lambda s=s: (w_m0(kind, s), w_off(kind, 1, s))))
        ops.append((lag+sp*s, lambda s=s: (LG.wait(("wr", 0, s)), w_dma(kind, 1, s, prep=False))))
    return ops
def merge(valu, ops):
    ops = sorted(enumerate(ops), key=lambda t: (t[1][0], t[0]))
    pos = 0; k = 0
    for ins in valu:
        while k < len(ops) and ops[k][1][0] <= pos: ops[k][1][1](); k += 1
        e(ins); pos += 2 if ins.startswith(("v_exp", "v_rcp")) else 1
    while k < len(ops): ops[k][1][1](); k += 1
def takeover(kind):
    LG.set([])
    merge([], takeover_ops(kind, 3))
def stouch_base(kind, col):
    e(f"s_lshl_b32 s{sTB}, s{sIDX}, 2")
    e(f"s_add_u32 s{sTB}, s{sTB}, s{sPR}")
    e(f"s_mul_i32 s{sTB}, s{sTB}, {5*(2048 if kind == 1 else 1024)}")
    e(f"s_add_u32 s{sTB}, s{sTB}, {col}")
def stouch(kind, i):
    r, l = i >> 2, i & 3
    off = r*2048 + (l & 1)*128 + (l >> 1)*1024 if kind == 1 else i*128
    S_TCH = S_W1 if kind == 1 else S_W2
    if P["st2"]: e(f"s_buffer_load_dwordx2 {sr(sDUM,2)}, {sr(S_TCH,4)}, s{sTB} offset:{off+60}")
    else: e(f"s_buffer_load_dword s{sDUM}, {sr(S_TCH,4)}, s{sTB} offset:{off}")

EW = 64
EH = 74
ET = 82
EA = 90
EX = 92
def hreg(F, j):
    if j < 0: return EH + 4*F + (j+2)
    if j > 31: return EH + 4*F + 2 + (j-32)
    return ACC + 32*F + j
def breg(F, j): return ACC + 64 + 32*F + j
def glu(els):
    o = []
    for F, j in els: o.append(f"v_mul_f32 v{breg(F,j)}, s{sC}, v{breg(F,j)}")
    for F, j in els: o.append(f"v_exp_f32 v{breg(F,j)}, v{breg(F,j)}")
    for F, j in els: o.append(f"v_add_f32 v{breg(F,j)}, 1.0, v{breg(F,j)}")
    for F, j in els: o.append(f"v_rcp_f32 v{breg(F,j)}, v{breg(F,j)}")
    for F, j in els: o.append(f"v_mul_f32 v{hreg(F,j)}, v{hreg(F,j)}, v{breg(F,j)}")
    return o
EO = AF + 16
EB = AF
def conv_silu(els, dst):
    o = []
    for i, (F, j) in enumerate(els): o.append(f"v_mul_f32 v{EO+i}, v{EW+5*F}, v{hreg(F,j-2)}")
    for t in range(1, 5):
        for i, (F, j) in enumerate(els): o.append(f"v_fmac_f32 v{EO+i}, v{EW+5*F+t}, v{hreg(F,j-2+t)}")
    for i, (F, j) in enumerate(els): o.append(f"v_exp_f32 v{ET+i}, v{EO+i}")
    for i, (F, j) in enumerate(els): o.append(f"v_fma_f32 v{ET+i}, v{ET+i}, s{sC}, s{sC}")
    for i, (F, j) in enumerate(els): o.append(f"v_rcp_f32 v{ET+i}, v{ET+i}")
    for i, (F, j) in enumerate(els): o.append(f"v_mul_f32 v{EO+i}, v{EO+i}, v{ET+i}")
    for i, (F, j) in enumerate(els):
        if j % 2 == 0: o.append(f"v_cvt_pk_bf16_f32 v{dst(F,j//2)}, v{EO+i}, v{EO+i+1}")
    return o
def emit(lst):
    for s in lst: e(s)
def slots(lst): return sum(2 if i.startswith(("v_exp", "v_rcp")) else 1 for i in lst)

BND = [(F, j) for F in range(2) for j in (0, 1, 30, 31)]
def e_stream(var, tag):
    dst = dst_ss if var == 1 else dst_b
    marks = {}
    v = []; ops = []
    v.append(f"v_and_b32 v{EA}, 15, v{vL}")
    v.append(f"v_lshlrev_b32 v{EA+1}, 1, v{EA}")
    v.append(f"v_lshlrev_b32 v{EA}, 4, v{EA}")
    v.append(f"v_lshlrev_b32 v{EB}, 2, v{vL}")
    v += glu(BND)
    p_bnd = slots(v)
    if P["exch"]:
        for F in range(2):
            v.append(f"v_cvt_pk_bf16_f32 v{ET+2}, v{hreg(F,0)}, v{hreg(F,1)}")
            v.append(f"v_cvt_pk_bf16_f32 v{ET+3}, v{hreg(F,30)}, v{hreg(F,31)}")
            v.append(f"v_mov_b32 v{EX+2*F+1}, 1")
            v.append(f"v_cndmask_b32 v{EX+2*F}, v{ET+3}, v{ET+2}, {sr(sQ0,2)}")
        v.append(f"v_add_u32 v{ET+2}, 256, v{EA}")
        v.append(f"v_add_u32 v{ET+4}, 16384, v{EA}")
        v.append(f"v_cndmask_b32 v{ET+3}, v{ET+2}, v{EA}, {sr(sQ0,2)}")
        v.append(f"v_cndmask_b32 v{EA}, v{ET+4}, v{ET+2}, {sr(sQ0,2)}")
        def publish():
            e(f"s_mov_b64 exec, {sr(sNB,2)}")
            e(f"buffer_store_dwordx4 {vr(EX,4)}, v{ET+3}, {sr(S_WS,4)}, s{sT0} offen sc1"); VM.push("pub")
            e("s_mov_b64 exec, -1")
        ops.append((slots(v), publish))
    inner = [[(F, j) for F in range(2) for j in range(j0, j0+4)] for j0 in range(2, 30, 4)]
    GA = P["gahead"]
    for i in range(GA): v += glu(inner[i])
    p_w = slots(v)
    k = 0
    for F in range(2):
        for t in range(5):
            so, off = (sCOL, t*1024+32*F) if t < 4 else (sT2, 32*F)
            ops.append((4 + k*(p_w-70)//10, lambda F=F, t=t, so=so, off=off: (
                e(f"buffer_load_ushort v{EW+5*F+t}, v{EA+1}, {sr(S_DW,4)}, s{so} offen offset:{off}"), VM.push("dw"))))
            k += 1
    ops.append((p_w, lambda: VM.wait("dw")))
    for r in range(EW, EW+10): v.append(f"v_lshlrev_b32 v{r}, 16, v{r}")
    for r in range(EW, EW+10): v.append(f"v_mul_f32 v{r}, s{sC}, v{r}")
    k = 0
    for F in range(2):
        for i in range(2):
            ops.append((p_w+30+40*k, lambda F=F, i=i: e(f"ds_bpermute_b32 v{hreg(F,-2+i)}, v{EB}, v{hreg(F,30+i)} offset:192")))
            ops.append((p_w+50+40*k, lambda F=F, i=i: e(f"ds_bpermute_b32 v{hreg(F,32+i)}, v{EB}, v{hreg(F,i)} offset:64")))
            k += 1
    base = 0
    def inbound():
        if P["exch"]:
            e(f"s_mov_b64 exec, {sr(sNB,2)}")
            e(f"buffer_load_dwordx4 {vr(EX,4)}, v{EA}, {sr(S_WS,4)}, s{sT1} offen sc1")
            e("s_mov_b64 exec, -1")
    for i in range(7):
        if i == P["inb"]:
            v += [f"v_mov_b32 v{EX}, 0", f"v_mov_b32 v{EX+2}, 0"]
            ops.append((slots(v), inbound))
            assert slots(v) < P["hpos"]
        v += conv_silu(inner[i], dst)
        marks[i] = slots(v)
        if i+GA < 7: v += glu(inner[i+GA])
    if var == 1: ops.append((P["s1pos"], lambda: cond_barrier("s1e", 1)))
    if P["tch"] & 4:
        n = 20*var
        for i in range(n): ops.append((9+i*(600//n), lambda i=i: stouch(var, i)))
    if var == 2:
        y = P["ypos"] - base
        ops.append((y, lambda: e("s_barrier")))
        SWH[0] = 0
        for k, i in enumerate(SW_ORDER): ops.append((y+8+30*k, lambda i=i: s_write(dst_ss, i)))
    if P["t0st"] == 2 and var == 1:
        for k in range(7): ops.append((200*k, lambda k=k: stamp(4+k, True)))
    def poll():
        VM.wait("old"); LG.wait("old")
        if not P["exch"]: return
        e(f"s_mov_b64 exec, {sr(sNB,2)}")
        e(f"s_mov_b32 s{sSPIN}, 0x8000")
        lab(f"L_poll{tag}")
        e(f"v_and_b32 v{EA+1}, v{EX+1}, v{EX+3}")
        e(f"v_cmp_eq_u32 vcc, 1, v{EA+1}")
        e("s_nop 1")
        e("s_cmp_eq_u64 vcc, exec")
        e(f"s_cbranch_scc0 L_repoll{tag}")
        lab(f"L_polled{tag}")
        e("s_mov_b64 exec, -1")
        outl.append(f"""L_repoll{tag}:
    s_sub_u32 s{sSPIN}, s{sSPIN}, 1
    s_cbranch_scc1 L_polled{tag}
    buffer_load_dwordx4 {vr(EX,4)}, v{EA}, {sr(S_WS,4)}, s{sT1} offen sc1
    s_waitcnt vmcnt(0)
    s_branch L_poll{tag}""")
    assert slots(v) >= P["hpos"]
    ops.append((slots(v), poll))
    v += etail(dst)
    return v, ops, marks

def e_split(v):
    pos = 0
    for n, ins in enumerate(v):
        if pos >= P["hpos"]: return n, pos
        pos += slots([ins])
def e_head(var):
    VM.set([]); LG.set([])
    e(f"s_add_u32 s{sT2}, s{sCOL}, 4096")
    e(f"s_lshl_b32 s{sT0}, s{sU}, 9")
    e(f"s_lshl_b32 s{sT1}, s2, 13")
    e(f"s_add_u32 s{sT1}, s{sT1}, s{sT0}")
    e(f"s_add_u32 s{sT0}, s{sT1}, 8192")
    v, ops, marks = e_stream(var, "x")
    n, pos = e_split(v)
    merge(v[:n], [o for o in ops if o[0] < pos])
def e_rest(var, tag, extra, swr):
    h = SWH[0]
    v, ops, marks = e_stream(var, tag)
    SWH[0] = h
    n, pos = e_split(v)
    VM.set(["old"]); LG.set(["old"])
    ops = [(p-pos, f) for p, f in ops if p >= pos] + extra
    dst = dst_ss if var == 1 else dst_b
    if swr:
        p0 = max(marks[5]-pos, swr)
        for k, i in enumerate((1, 5, 2, 6)): ops.append((p0+12*k, lambda i=i: s_write(dst, i)))
    merge(v[n:], ops)
    if swr:
        for i in (0, 4, 3, 7): s_write(dst, i)

def etail(dst):
    o = []
    for F in range(2):
        o.append(f"v_lshlrev_b32 v{ET+2*F}, 16, v{EX+2*F}")
        o.append(f"v_and_b32 v{ET+2*F+1}, 0xffff0000, v{EX+2*F}")
    for F in range(2):
        for i in range(2):
            o.append(f"v_cndmask_b32 v{hreg(F,-2+i)}, v{hreg(F,-2+i)}, v{ET+2*F+i}, {sr(sQ0,2)}")
            o.append(f"v_cndmask_b32 v{hreg(F,32+i)}, v{hreg(F,32+i)}, v{ET+2*F+i}, {sr(sQ3,2)}")
    return o + conv_silu(BND, dst)

def gen_E1():
    lab("L_E1")
    e_head(1)
    e(f"s_cbranch_vccnz L_E1_ret")
    outl.append(f"L_E1_ret:\n    s_setpc_b64 {sr(sRET,2)}")
    stamp(5)
    e("s_barrier")
    e("s_setprio 1")
    e(f"s_add_u32 s{sCOL}, s{sCOL}, 512")
    e(f"s_add_u32 s{sU}, s{sU}, 8")
    e_rest(1, "a", takeover_ops(1) + [(70+4*k, lambda k=k: x_read(k >> 1, k & 1)) for k in range(4)], 0)
    stamp(11)

def call(l): e(f"s_call_b64 {sr(sRET,2)}, {l}")

def g1_addr():
    e(f"v_lshrrev_b32 v{vB0}, 2, v{vL}")
    e(f"v_lshlrev_b32 v{vB0}, 6, v{vB0}")
    e(f"v_bfe_u32 v{vB1}, v{vL}, 4, 1")
    e(f"v_lshl_add_u32 v{vB0}, v{vB1}, 5, v{vB0}")
    e(f"v_and_b32 v{vB1}, 3, v{vL}")
    e(f"v_lshl_add_u32 v{vB0}, v{vB1}, 3, v{vB0}")
    e(f"v_add_u32 v{vB0}, s{sRB}, v{vB0}")
    e(f"v_xor_b32 v{vB1}, 32, v{vB0}")
    e(f"v_lshrrev_b32 v{vSW}, 4, v{vL}")
    e(f"v_bfe_u32 v{vA1}, v{vL}, 1, 3")
    e(f"v_xor_b32 v{vA1}, v{vA1}, v{vSW}")
    e(f"v_lshlrev_b32 v{vA1}, 4, v{vA1}")
    e(f"v_and_b32 v{vA0}, 15, v{vL}")
    e(f"v_lshl_add_u32 v{vA0}, v{vA0}, 7, v{vA1}")
    e(f"v_xor_b32 v{vA1}, 64, v{vA0}")
    e(f"v_lshlrev_b32 v{vSW}, 6, v{vSW}")
    e(f"v_and_or_b32 v{vSW}, v{vL}, 15, v{vSW}")
    e(f"v_lshlrev_b32 v{vSW}, 5, v{vSW}")
    e(f"v_bfe_u32 v9, v{vL}, 2, 1")
    e(f"v_lshl_add_u32 v{vSW}, v9, 4, v{vSW}")
    e(f"s_lshl_b32 s{sT2}, s{sW}, 13")
    e(f"v_add_u32 v{vSW}, s{sT2}, v{vSW}")
def w2_voff(d, t):
    e(f"v_and_b32 v{d}, 0x30, v{vW}")
    e(f"v_lshrrev_b32 v{t}, 5, v{vL}")
    e(f"v_lshl_add_u32 v{d}, v{t}, 14, v{d}")
    e(f"v_bfe_u32 v{t}, v{vL}, 2, 3")
    e(f"v_lshl_add_u32 v{d}, v{t}, 10, v{d}")
def g2_addr():
    e(f"s_lshl_b32 s{sCOL}, s{sW}, 7")
    g2_addr_v()
def g2_addr_v():
    e(f"v_lshrrev_b32 v{vA0}, 5, v{vL}")
    e(f"v_lshlrev_b32 v{vA0}, 6, v{vA0}")
    e(f"v_and_or_b32 v{vA0}, v{vL}, 31, v{vA0}")
    e(f"v_lshlrev_b32 v{vA0}, 3, v{vA0}")
    e(f"v_and_b32 v{vA1}, 16, v{vL}")
    e(f"v_xor_b32 v{vA0}, v{vA0}, v{vA1}")

OW, OR, OG = SS, SS+4, SS+5
def out_addr(stg):
    t = SS+6
    e(f"v_and_b32 v{OW}, 15, v{vL}")
    e(f"v_lshrrev_b32 v{t}, 5, v{vL}")
    e(f"v_xor_b32 v{t}, v{t}, v{OW}")
    e(f"v_and_b32 v{t}, 7, v{t}")
    e(f"v_lshlrev_b32 v{t}, 4, v{t}")
    e(f"v_lshl_add_u32 v{OW}, v{OW}, 7, v{t}")
    e(f"v_bfe_u32 v{t}, v{vL}, 4, 1")
    e(f"v_lshl_add_u32 v{OW}, v{t}, 3, v{OW}")
    e(f"v_add_u32 v{OW}, s{stg}, v{OW}")
    for F in range(1, 4): e(f"v_xor_b32 v{OW+F}, {32*F}, v{OW}")
    e(f"v_lshrrev_b32 v{OG}, 3, v{vL}")
    e(f"v_xor_b32 v{OR}, v{OG}, v{vL}")
    e(f"v_and_b32 v{OR}, 7, v{OR}")
    e(f"v_lshlrev_b32 v{OR}, 4, v{OR}")
    e(f"v_lshl_add_u32 v{OR}, v{OG}, 7, v{OR}")
    e(f"v_add_u32 v{OR}, s{stg}, v{OR}")
    e(f"v_and_b32 v{t}, 7, v{vL}")
    e(f"v_lshlrev_b32 v{t}, 4, v{t}")
    e(f"v_lshl_add_u32 v{OG}, v{OG}, 10, v{t}")

def gen_out(var):
    LG.set([]); VM.set([])
    stamp(10)
    e(f"s_add_u32 s{sOFF}, s{sROW}, s{sCOL}")
    def cvt(tb):
        for F in range(4):
            a = acc2(tb, F)
            e(f"v_cvt_pk_bf16_f32 v{a}, v{a}, v{a+1}")
            e(f"v_cvt_pk_bf16_f32 v{a+1}, v{a+2}, v{a+3}")
    def stage(r):
        for t2 in range(2):
            for F in range(4):
                e(f"ds_write_b64 v{OW+F}, {vr(acc2(2*r+t2,F),2)} offset:{2048*t2}"); LG.push("ow")
        for i in range(4):
            e(f"ds_read_b128 {vr(8+16*r+4*i,4)}, v{OR} offset:{1024*i}"); LG.push(("or", r, i))
    def store(r, paced):
        for i in range(4):
            LG.wait(("or", r, i))
            if not (paced and P["noast"]): e(f"buffer_store_dwordx4 {vr(8+16*r+4*i,4)}, v{OG}, {sr(S_OUT,4)}, s{sOFF} offen {P['stflag']}")
            e(f"s_add_u32 s{sOFF}, s{sOFF}, 8192")
            if paced and P["pace"]: e(f"s_waitcnt vmcnt({P['pace']-1})")
    if var == "A":
        e(f"s_lshl_b32 s{sT2}, s{sPR}, 12")
        out_addr(sT2)
        for tb in range(8): cvt(tb)
        e("s_barrier")
        stamp(12)
        if P["gentle"]:
            for tb in range(8):
                for F in range(4):
                    e(f"ds_write_b64 v{OW+F}, {vr(acc2(tb,F),2)} offset:{2048*(tb&1)}")
                    if F % P["gentle"] == P["gentle"]-1: e("s_waitcnt lgkmcnt(0)")
                for i in range(2):
                    e(f"ds_read_b128 {vr(8+8*tb+4*i,4)}, v{OR} offset:{2048*(tb&1)+1024*i}")
                    e("s_waitcnt lgkmcnt(0)")
                    if P["pace"]: e(f"s_waitcnt vmcnt({P['pace']-1})")
                    if not P["noast"]: e(f"buffer_store_dwordx4 {vr(8+8*tb+4*i,4)}, v{OG}, {sr(S_OUT,4)}, s{sOFF} offen {P['stflag']}")
                    e(f"s_add_u32 s{sOFF}, s{sOFF}, 8192")
        else:
          for r in range(4):
            if P["noast"] < 2: stage(r); store(r, True)
        e("s_branch L_end")
        return
    cvt(0); cvt(1); stage(0)
    for r in range(4):
        if r < 3: cvt(2*r+2); cvt(2*r+3)
        store(r, False)
        if r < 3: stage(r+1)
    lab("L_end")
    if P["stamps"]:
        stamp(13)
        e("s_waitcnt vmcnt(0)")
        stamp(14)
        e(f"s_memtime {sr(sST+2*15,2)}")
        e("s_waitcnt lgkmcnt(0)")
        e(f"s_sub_u32 s{sST+30}, s{sST+30}, s{sST+32}")
        if P["probe"] >= -1:
            e(f"s_add_u32 s{sT1}, s{sST}, {P['plen']}")
            if P["probe"] >= 0:
                e(f"s_add_u32 s{sT2}, s{sST+2*P['probe']}, {P['plen']}")
                e(f"s_cmp_eq_u32 s{sGRP}, {P['pgrp']}")
                e(f"s_cselect_b32 s{sT1}, s{sT2}, s{sT1}")
            if P["pwg"] >= 0:
                e(f"s_cmp_eq_u32 s2, {P['pwg']}")
                e(f"s_cselect_b32 s{sT1}, s{sT1}, s{sST}")
            lab("L_probe")
            e(f"s_memrealtime {sr(sPC,2)}")
            e("s_waitcnt lgkmcnt(0)")
            e(f"s_sub_u32 s{sT2}, s{sPC}, s{sT1}")
            e(f"s_cmp_lt_i32 s{sT2}, 0")
            e("s_cbranch_scc1 L_probe")
            e("s_endpgm")
        for i in range(16): e(f"v_mov_b32 v{8+i}, s{sST+2*i}")
        e(f"s_lshl_b32 s{sT0}, s2, 3")
        e(f"s_add_u32 s{sT0}, s{sT0}, s{sW}")
        e(f"s_lshl_b32 s{sT0}, s{sT0}, 6")
        e(f"s_add_u32 s{sT0}, s{sT0}, 0x400000")
        e("v_mov_b32 v0, 0")
        e("s_mov_b64 exec, 1")
        for i in range(4):
            e(f"buffer_store_dwordx4 {vr(8+4*i,4)}, v0, {sr(S_WS,4)}, s{sT0} offen offset:{16*i}")
    e("s_endpgm")

ntouch = [0]
def touch(srd, vreg, shift, base, dst):
    ntouch[0] += 1
    e(f"s_lshl_b32 s{sT2}, s{sIDX}, {shift}")
    e(f"s_add_u32 s{sT2}, s{sT2}, {base}")
    e(f"buffer_load_dword v{dst}, v{vreg}, {sr(srd,4)}, s{sT2} offen {P['tflag']}")
    e(f"s_cmp_lg_u32 s{sIDX}, 30")
    e(f"s_cbranch_scc1 L_touch{ntouch[0]}")
    e(f"s_add_u32 s{sT2}, s{sT2}, {1 << shift}")
    e(f"buffer_load_dword v{dst}, v{vreg}, {sr(srd,4)}, s{sT2} offen {P['tflag']}")
    lab(f"L_touch{ntouch[0]}")
def touch_addr1(v, t):
    e(f"v_lshrrev_b32 v{v}, 1, v{vL}")
    e(f"v_lshlrev_b32 v{v}, 10, v{v}")
    e(f"v_and_b32 v{t}, 1, v{vL}")
    e(f"v_lshl_add_u32 v{v}, v{t}, 7, v{v}")
def touch_addr2(v, t):
    e(f"v_lshrrev_b32 v{v}, 2, v{vL}")
    e(f"v_lshlrev_b32 v{v}, 10, v{v}")
    e(f"v_and_b32 v{t}, 3, v{vL}")
    e(f"v_lshl_add_u32 v{v}, v{t}, 7, v{v}")
nonly = [0]
class only_wave:
    def __init__(self, pr): self.pr = pr
    def __enter__(self):
        nonly[0] += 1; self.l = f"L_only{nonly[0]}"
        e(f"s_cmp_eq_u32 s{sPR}, {self.pr}"); e(f"s_cbranch_scc0 {self.l}")
    def __exit__(self, *a): lab(self.l)

def gen_main():
    global L
    main = L; L = []; gen_G1T0(); t0_code = L; L = main

    lab(f"{NAME}_kernel")
    e(f"s_cmp_ge_u32 s2, {NWG}")
    e("s_cbranch_scc1 L_exit")
    e(f"s_load_dwordx4 s[4:7], s[0:1], 0")
    e(f"s_load_dwordx4 s[12:15], s[0:1], 16")
    e(f"s_load_dwordx4 s[16:19], s[0:1], 32")
    e(f"s_load_dwordx2 s[24:25], s[0:1], 48")
    stamp(0)
    if P["stamps"]: e(f"s_memtime {sr(sST+32,2)}")
    e(f"v_lshrrev_b32 v8, 6, v0")
    e(f"v_and_b32 v{vL}, 63, v0")
    e(f"v_readfirstlane_b32 s{sW}, v8")
    e(f"s_mov_b32 s{sC}, 0xbfb8aa3b")
    e(f"s_lshr_b32 s{sIDX}, s2, 3")
    e(f"s_lshl_b32 s{sROW}, s2, 17")
    e(f"s_lshr_b32 s{sGRP}, s{sW}, 2")
    e(f"s_and_b32 s{sPR}, s{sW}, 3")
    e(f"s_lshl_b32 s{sRB}, s{sPR}, 13")
    e(f"s_add_u32 s{sRB}, s{sRB}, 131072")
    e(f"s_lshl_b32 s{sCOL}, s{sW}, 6")
    e(f"s_mov_b32 s{sU}, s{sW}")
    e(f"s_mov_b32 s{sMODE}, 0")
    e(f"s_mov_b32 s{sQ0}, 0xffff")
    e(f"s_mov_b32 s{sQ0+1}, 0")
    e(f"s_mov_b32 s{sQ3}, 0")
    e(f"s_mov_b32 s{sQ3+1}, 0xffff0000")
    e(f"s_cmp_ge_u32 s2, 125")
    e(f"s_cselect_b32 s{sT0}, 125, 0")
    e(f"s_sub_u32 s{sT0}, s2, s{sT0}")
    e(f"s_cmp_lg_u32 s{sT0}, 0")
    e(f"s_cselect_b32 s{sNB}, 0xffff, 0")
    e(f"s_cmp_lg_u32 s{sT0}, 124")
    e(f"s_cselect_b32 s{sNB+1}, 0xffff0000, 0")
    e(f"v_lshrrev_b32 v8, 4, v{vL}")
    e(f"v_bfe_u32 v9, v{vL}, 2, 2")
    e(f"v_lshl_add_u32 v{vW}, v8, 3, v9")
    e(f"v_lshlrev_b32 v{vW}, 11, v{vW}")
    e(f"v_lshlrev_b32 v9, 1, v8")
    e(f"v_xor_b32 v9, v9, v{vL}")
    e(f"v_and_b32 v9, 3, v9")
    e(f"v_lshl_add_u32 v{vW}, v9, 4, v{vW}")
    e(f"s_and_b32 s{sT0}, s{sPR}, 1")
    e(f"s_lshl_b32 s{sT1}, s{sT0}, 2")
    e(f"v_xor_b32 v{vX}, v8, v{vL}")
    e(f"v_xor_b32 v{vX}, s{sT1}, v{vX}")
    e(f"v_and_b32 v{vX}, 7, v{vX}")
    e(f"v_lshlrev_b32 v{vX}, 4, v{vX}")
    e(f"v_lshrrev_b32 v9, 5, v{vL}")
    e(f"v_lshl_add_u32 v{vX}, v9, 15, v{vX}")
    e(f"v_bfe_u32 v9, v{vL}, 3, 2")
    e(f"v_lshl_add_u32 v{vX}, v9, 10, v{vX}")
    e(f"s_lshl_b32 s{sT0}, s{sT0}, 16")
    e(f"s_lshr_b32 s{sT1}, s{sPR}, 1")
    e(f"s_lshl_b32 s{sT1}, s{sT1}, 12")
    e(f"s_add_u32 s{sT0}, s{sT0}, s{sT1}")
    e(f"s_add_u32 s{sXG}, s{sT0}, s{sROW}")
    e(f"s_lshl_b32 s{sXL}, s{sPR}, 10")
    if not P["pro"]: g1_addr()
    touch_addr1(15, 14)
    e("s_waitcnt lgkmcnt(0)")
    if P["t0st"] == 3: stamp(4, True)
    e("s_mov_b32 s8, s6"); e("s_mov_b32 s9, s7")
    def srd(b, n):
        e(f"s_mov_b32 s{b+2}, {n}"); e(f"s_mov_b32 s{b+3}, 0x20000")
    srd(S_X, 32768000); srd(S_W1, 1048576)
    def late_srds():
        e("s_mov_b32 s20, s12"); e("s_mov_b32 s21, s13")
        e("s_mov_b32 s12, s14"); e("s_mov_b32 s13, s15")
        e("s_mov_b32 s28, s18"); e("s_mov_b32 s29, s19")
        srd(S_W2, 524288); srd(S_OUT, 32768000); srd(S_DW, 5120)
        srd(S_WS, 0x800000 if P["stamps"] else 252*8192); srd(S_DBG, 256)
    e(f"s_cmp_eq_u32 s{sGRP}, 1")
    e("s_cbranch_scc1 L_B")

    if P["bench"]:
        if P["pro"]: g1_addr()
        late_srds()
        touch_addr2(16, 14)
        e(f"s_lshl_b32 s{sT3}, s{sPR}, 8")
        touch(S_W1, 15, 15, f"s{sT3}", 10)
        touch(S_W2, 16, 14, 0, 10)
        for kc in range(8):
            for u in range(4): x_dma(kc, u)
        e("s_waitcnt vmcnt(0)")
        e("s_barrier")
        for rep in range(3):
            VM.set([]); first_reads(1); takeover(1)
            stamp(1+2*rep); call("L_G1"); stamp(2+2*rep)
            e(f"s_add_u32 s{sCOL}, s{sCOL}, 256")
        w2_voff(vW, 8); g2_addr(); out_addr(sRB)
        VM.set([]); first_reads(2); takeover(2)
        e("s_mov_b64 vcc, 0")
        stamp(9)
        e("s_branch L_G2")
    cm("group A")
    VM.set([])
    if P["pro"]:
        g1_addr(); late_srds()
        if P["pro"] == 1: e("s_barrier")
    for s in range(8): w_dma(1, 0, s)
    if P["t0st"] == 3: stamp(5, True)
    if not P["pro"]: late_srds()
    if P["ext"]:
        e(f"s_lshl_b32 s{sRX}, s{sPR}, 12")
        e(f"s_add_u32 s{sRX}, s{sRX}, 98304")
        e(f"s_sub_u32 s{sT0}, s{sRB}, s{sRX}")
        e(f"v_subrev_u32 v{vE0}, s{sT0}, v{vB0}")
        e(f"v_subrev_u32 v{vE0+1}, s{sT0}, v{vB1}")
        for s in range(8): t0_dma(8+s)
        LG.set([])
        for s in range(8):
            VM.wait(("w", 0, s))
            if P["t0st"] == 3 and s in (0, 7): stamp(6 if s == 0 else 7, True)
            w_read(0, s)
            if s >= 2: LG.wait(("wr", 0, s-2)); t0_dma(16+s-2)
        for s in (6, 7): LG.wait(("wr", 0, s)); t0_dma(16+s)
    elif P["t0st"] == 3:
        VM.wait(("w", 0, 0)); stamp(6, True); VM.wait(("w", 0, 7)); stamp(7, True); takeover(1)
    else:
        takeover(1)
    stamp(1)
    e("s_barrier")
    first_reads(1)
    stamp(2)
    call("L_G1T0")
    stamp(3)
    stouch_base(1, 512)
    e("s_mov_b64 vcc, 0")
    call("L_E1")
    stamp(6)
    stouch_base(2, 0)
    w2_voff(vW, vA0)
    g2_addr_v()
    e_head(2)
    e(f"v_add_u32 v{vSW}, 0x10000, v{vSW}")
    e(f"s_lshl_b32 s{sCOL}, s{sW}, 7")
    e("s_waitcnt lgkmcnt(0)")
    stamp(7)
    e("s_barrier")
    e("s_setprio 1")
    e_rest(2, "b", takeover_ops(2) + [(60+6*k, lambda k=k: s_read(k >> 1, k & 1)) for k in range(4)], 90)
    e("s_mov_b64 vcc, -1")
    stamp(9)
    e("s_branch L_G2")

    lab("L_B")
    if P["bench"]: e("s_endpgm")
    VM.set([])
    if P["pro"]:
        e("s_setprio 3")
        with only_wave(0): touch(S_W1, 15, 15, 0, 100)
        for u in range(4): x_dma(0, u)
        for u in range(P["x1n"]): x_dma(1, u)
        if P["pro"] == 1: e("s_barrier")
        if P["t0st"] == 3: stamp(5, True)
        e("s_setprio 0")
        g1_addr()
    else:
        for u in range(4): x_dma(0, u)
        with only_wave(0): touch(S_W1, 15, 15, 0, 100)
    late_srds()
    if P["tch"] & 16:
        touch_addr2(16, 14)
        with only_wave(1): touch(S_W1, 15, 15, 256, 100)
        with only_wave(2): touch(S_W1, 15, 15, 512, 100); touch(S_W2, 16, 14, 0, 100)
        with only_wave(3): touch(S_W1, 15, 15, 768, 100); touch(S_W2, 16, 14, 512, 100)
    with only_wave(1):
        e(f"s_getpc_b64 {sr(sPC,2)}")
        lab("L_pc")
        e(f"s_and_b32 s{sT0}, s{sIDX}, 7")
        e(f"s_lshl_b32 s{sT0}, s{sT0}, 13")
        e(f"v_lshl_add_u32 v8, v{vL}, 7, s{sT0}")
        e(f"v_min_u32 v8, L_exit-L_pc, v8")
        e(f"global_load_dword v100, v8, {sr(sPC,2)}")
    xq = [(kc, u) for kc in range(1, 8) for u in range(4)]
    if P["ext"]:
        done = [-1]
        def xfill(lim=None):
            while xq and sum(1 for t in VM.q if t[0] == "x") < (lim or P["xd"]) and (xq[0][0] < 6 or done[0] >= xq[0][0]-2):
                x_dma(*xq.pop(0))
        xfill(P["xd0"])
    else:
        for kc in range(1, P["p0"]):
            for u in range(4):
                if not (P["pro"] and kc == 1 and u < P["x1n"]): x_dma(kc, u)
    if P["exch"]:
        cm("clear this workgroup's outbound hand-off slots (2 KB per wave)")
        for r in range(8, 12): e(f"v_mov_b32 v{r}, 0")
        e(f"v_lshlrev_b32 v12, 4, v{vL}")
        e(f"s_lshl_b32 s{sT0}, s2, 13")
        e(f"s_lshl_b32 s{sT1}, s{sPR}, 11")
        e(f"s_add_u32 s{sT0}, s{sT0}, s{sT1}")
        e(f"s_add_u32 s{sT0}, s{sT0}, 8192")
        e(f"buffer_store_dwordx4 v[8:11], v12, {sr(S_WS,4)}, s{sT0} offen sc1"); VM.push("clr")
        e(f"buffer_store_dwordx4 v[8:11], v12, {sr(S_WS,4)}, s{sT0} offen offset:1024 sc1"); VM.push("clr")
        e(f"v_lshrrev_b32 v18, 4, v{vL}")
        e(f"v_and_b32 v18, 2, v18")
        e(f"s_sub_u32 s{sT3}, s2, 1")
        e(f"v_add_u32 v18, s{sT3}, v18")
        e(f"v_mov_b32 v19, 1")
        e(f"v_mov_b32 v20, s2")
    stouch_base(1, 256)
    bars = [0] + T0["bars"]
    assert len(bars) >= 5
    for i, kc in enumerate(bars):
        if P["ext"]:
            done[0] = kc-1
            for u in range(4):
                xfill()
                if xq: VM.wait_first(("x", kc))
            xfill()
        VM.wait(("x", kc))
        if i == 1: VM.wait("clr")
        if i == 0: stamp(1)
        if i == len(bars)-1:
            if P["exch"]:
                with only_wave(0):
                    e("s_waitcnt vmcnt(0)")
                    e(f"s_mov_b64 exec, {sr(sNB,2)}")
                    e(f"s_mov_b32 s{sSPIN}, 0x8000")
                    lab("L_fpoll")
                    e(f"v_cmp_ne_u32 vcc, 0, v22")
                    e("s_nop 1")
                    e("s_cmp_eq_u64 vcc, exec")
                    e("s_cbranch_scc0 L_frepoll")
                    lab("L_fpolled")
                    e("s_mov_b64 exec, -1")
                outl.append(f"""L_frepoll:
    s_sub_u32 s{sSPIN}, s{sSPIN}, 1
    s_cbranch_scc1 L_fpolled
    buffer_load_ubyte v22, v18, {sr(S_DBG,4)}, 0 offen sc1
    s_waitcnt vmcnt(0)
    s_branch L_fpoll""")
        e("s_barrier")
        if i == len(bars)-1: stamp(2)
        if i == 1 and P["exch"]:
            with only_wave(0):
                if P["sflag"]:
                    e(f"s_and_b32 s98, s2, 3")
                    e(f"s_lshl_b32 s98, s98, 3")
                    e(f"s_lshl_b32 s98, 1, s98")
                    e(f"s_and_b32 s99, s2, 0xfc")
                    e(f"s_atomic_or s98, {sr(S_DBG,2)}, s99")
                else:
                    e("s_mov_b64 exec, 1")
                    e(f"buffer_store_byte v19, v20, {sr(S_DBG,4)}, 0 offen sc1")
                    e("s_mov_b64 exec, -1")
        if i < 4 and P["tch"] & 2:
            for k in range(5): stouch(1, 5*i+k)
        if i == 4:
            e(f"s_lshl_b32 s{sT2}, s{sIDX}, 2")
            e(f"s_add_u32 s{sT2}, s{sT2}, s{sPR}")
            e(f"s_lshl_b32 s{sT2}, s{sT2}, 7")
            e(f"s_buffer_load_dwordx2 {sr(sDUM,2)}, {sr(S_DW,4)}, s{sT2} offset:60")
        if i == len(bars)-2 and P["exch"]:
            with only_wave(0):
                e(f"s_mov_b64 exec, {sr(sNB,2)}")
                e(f"buffer_load_ubyte v22, v18, {sr(S_DBG,4)}, 0 offen sc1")
                e("s_mov_b64 exec, -1")
    w2_voff(vX, 8)
    e(f"s_lshl_b32 s{sT3}, s{sPR}, 7")
    e("s_waitcnt vmcnt(0) lgkmcnt(0)")
    first_reads(1)
    e("s_barrier")
    VM.set([])
    takeover(1)
    stamp(3)
    call("L_G1")
    stamp(4)
    stouch_base(1, 768)
    e("s_mov_b64 vcc, 0")
    e(f"s_mov_b32 s{sMODE}, 1")
    call("L_E1")
    stamp(7)
    e(f"s_mov_b32 s{sTB}, 0x40000000")
    e(f"v_add_u32 v{vSW}, 0x10000, v{vSW}")
    e("s_mov_b64 vcc, -1")
    e("s_nop 0")
    call("L_E1")
    SWH[0] = 1
    e_rest(1, "c", [], 1)
    e("s_waitcnt lgkmcnt(0)")
    stamp(8)
    e("s_barrier")
    e(f"v_mov_b32 v{vW}, v{vX}")
    g2_addr()
    out_addr(sRB)
    e("s_mov_b64 vcc, 0")
    first_reads(2)
    e("s_barrier")
    VM.set([])
    takeover(2)
    stamp(9)
    gen_G2()
    L.extend(t0_code)
    gen_E1()
    gen_G1()
    for o in outl: L.append(o)
    lab("L_exit")
    e("s_endpgm")

HEAD = f"""; Fused conformer conv module: GEMM1 + GLU + depthwise conv + SiLU + GEMM2, one 128-row tile per workgroup.
; @launch grid=({NWG},1,1) block=(512,1,1) lds=163840
.amdgcn_target "amdgcn-amd-amdhsa--gfx950"
.text
.globl {NAME}_kernel
.p2align 8
.type {NAME}_kernel,@function
"""
TAIL = f"""
.section .rodata,"a"
.p2align 6
.amdhsa_kernel {NAME}_kernel
  .amdhsa_next_free_vgpr 256
  .amdhsa_next_free_sgpr 102
  .amdhsa_accum_offset 256
  .amdhsa_group_segment_fixed_size 0
  .amdhsa_kernarg_size 56
  .amdhsa_user_sgpr_count 2
  .amdhsa_user_sgpr_kernarg_segment_ptr 1
  .amdhsa_system_sgpr_workgroup_id_x 1
.end_amdhsa_kernel
"""
gen_main()
txt = HEAD + "\n".join(L) + TAIL
if out_path is None: out_path = f"cdna_kernels/{NAME}.s"
open(out_path, "w").write(txt)
sys.stderr.write(f"{out_path}: T0 barriers {T0['bars']}\n")
```

```python
import sys
def kernel(name, bodyA, bodyB, itersA, itersB, nwaves=8, grid=1, prioA=0, prioB=0, lds=65536, initA="", initB=""):
    s = []
    s.append(f"; @launch grid=({grid},1,1) block=({nwaves*64},1,1) lds={lds}")
    s.append('.amdgcn_target "amdgcn-amd-amdhsa--gfx950"')
    s.append(".text")
    s.append(f".globl {name}\n.p2align 8\n.type {name},@function\n{name}:")
    s.append("""
    s_load_dwordx2 s[4:5], s[0:1], 48
    s_load_dwordx2 s[6:7], s[0:1], 0
    v_lshrrev_b32 v1, 6, v0
    s_nop 1
    v_readfirstlane_b32 s20, v1
    s_waitcnt lgkmcnt(0)
    s_mov_b32 s8, s4
    s_mov_b32 s9, s5
    s_mov_b32 s10, 0x100000
    s_mov_b32 s11, 0x20000
    s_mov_b32 s12, s6
    s_mov_b32 s13, s7
    s_mov_b32 s14, 32768000
    s_mov_b32 s15, 0x20000
    v_and_b32 v2, 63, v0
    v_lshlrev_b32 v3, 4, v0
    v_lshlrev_b32 v4, 4, v2
""")
    for r in range(16, 256, 4):
        s.append(f"    buffer_load_dwordx4 v[{r}:{r+3}], v3, s[12:15], 0 offen offset:{(r*16)%4096}")
    s.append("    s_waitcnt vmcnt(0)")
    for r in range(16, 48, 4):
        s.append(f"    ds_write_b128 v3, v[{r}:{r+3}] offset:{((r-16)//4)*8192}")
    s.append("    s_waitcnt lgkmcnt(0)")
    s.append("    s_mov_b32 s30, 0xbfb8aa3b")
    s.append("    s_barrier")
    s.append("    s_cmp_ge_u32 s20, 4\n    s_cbranch_scc1 L_B")
    s.append(f"    s_setprio {prioA}")
    s.append(initA)
    s.append(f"    s_mov_b32 s21, {itersA}")
    s.append("    s_memtime s[22:23]\n    s_waitcnt lgkmcnt(0)")
    s.append("    s_cmp_eq_u32 s21, 0\n    s_cbranch_scc1 L_done")
    s.append(".p2align 6\nL_A_loop:")
    s.append(bodyA)
    s.append("    s_sub_u32 s21, s21, 1\n    s_cmp_lg_u32 s21, 0\n    s_cbranch_scc1 L_A_loop")
    s.append("    s_branch L_done")
    s.append("L_B:")
    s.append(f"    s_setprio {prioB}")
    s.append(initB)
    s.append(f"    s_mov_b32 s21, {itersB}")
    s.append("    s_memtime s[22:23]\n    s_waitcnt lgkmcnt(0)")
    s.append("    s_cmp_eq_u32 s21, 0\n    s_cbranch_scc1 L_done")
    s.append(".p2align 6\nL_B_loop:")
    s.append(bodyB)
    s.append("    s_sub_u32 s21, s21, 1\n    s_cmp_lg_u32 s21, 0\n    s_cbranch_scc1 L_B_loop")
    s.append("L_done:")
    s.append("""
    s_waitcnt vmcnt(0) lgkmcnt(0)
    s_memtime s[24:25]
    s_waitcnt lgkmcnt(0)
    s_sub_u32 s24, s24, s22
    v_mov_b32 v5, s24
    s_lshl_b32 s26, s2, 3
    s_add_u32 s26, s26, s20
    s_lshl_b32 s26, s26, 2
    v_mov_b32 v6, s26
    buffer_store_dword v5, v6, s[8:11], 0 offen
    s_waitcnt vmcnt(0)
    s_endpgm
""")
    s.append(f""".section .rodata,"a"
.p2align 6
.amdhsa_kernel {name}
  .amdhsa_next_free_vgpr 256
  .amdhsa_next_free_sgpr 102
  .amdhsa_accum_offset 256
  .amdhsa_group_segment_fixed_size 0
  .amdhsa_kernarg_size 56
  .amdhsa_user_sgpr_count 2
  .amdhsa_user_sgpr_kernarg_segment_ptr 1
  .amdhsa_system_sgpr_workgroup_id_x 1
.end_amdhsa_kernel
""")
    return "\n".join(s)

def mfma_body(nds=6, fill="", tr=False):
    out = []
    k = 0
    for b in range(2):
        for a in range(4):
            acc = 128 + 16*(b*4+a)
            out.append(f"    v_mfma_f32_32x32x16_bf16 v[{acc}:{acc+15}], v[{64+4*a}:{67+4*a}], v[{80+4*b}:{83+4*b}], v[{acc}:{acc+15}]")
            if k < nds:
                if tr and k >= 4:
                    out.append(f"    ds_read_b64_tr_b16 v[{96+4*k}:{97+4*k}], v4 offset:{k*8192}")
                    out.append(f"    ds_read_b64_tr_b16 v[{98+4*k}:{99+4*k}], v4 offset:{k*8192+1024}")
                else:
                    out.append(f"    ds_read_b128 v[{96+4*k}:{99+4*k}], v4 offset:{k*8192}")
            if fill: out.append(fill.replace("#", str(k)))
            k += 1
    out.append("    s_waitcnt lgkmcnt(0)")
    return "\n".join(out)

def valu_body(kind, n=32):
    out = []
    for i in range(n):
        r = 16 + (i % 16)*2
        if kind == "fma": out.append(f"    v_fma_f32 v{r}, v{r+64}, v{r+65}, v{r}")
        elif kind == "fmac": out.append(f"    v_fmac_f32 v{r}, v{r+64}, v{r+65}")
        elif kind == "exp": out.append(f"    v_exp_f32 v{r}, v{r+64}")
        elif kind == "rcp": out.append(f"    v_rcp_f32 v{r}, v{r+64}")
        elif kind == "pkfma": out.append(f"    v_pk_fma_f32 v[{r}:{r+1}], v[{r+64}:{r+65}], v[{r+96}:{r+97}], v[{r}:{r+1}]")
        elif kind == "pkmul": out.append(f"    v_pk_mul_f32 v[{r}:{r+1}], v[{r+64}:{r+65}], v[{r+96}:{r+97}]")
        elif kind == "dot2": out.append(f"    v_dot2_f32_bf16 v{r}, v{r+64}, v{r+65}, v{r}")
        elif kind == "dot2c": out.append(f"    v_dot2c_f32_bf16 v{r}, v{r+64}, v{r+65}")
        elif kind == "cvt": out.append(f"    v_cvt_pk_bf16_f32 v{r}, v{r+64}, v{r+65}")
        elif kind == "mix":
            pass
    return "\n".join(out)

def epi_body(pk=False):
    out = []
    E = 4
    b = [16+i for i in range(E)]; a = [24+i for i in range(E)]; t = [32+i for i in range(E)]; h=[40+i for i in range(E+4)]; o=[56+i for i in range(E)]
    w = [60,62,64,66,68]
    if not pk:
        for i in range(E): out.append(f"    v_mul_f32 v{t[i]}, s30, v{b[i]}")
        for i in range(E): out.append(f"    v_exp_f32 v{t[i]}, v{t[i]}")
        for i in range(E): out.append(f"    v_add_f32 v{t[i]}, 1.0, v{t[i]}")
        for i in range(E): out.append(f"    v_rcp_f32 v{t[i]}, v{t[i]}")
        for i in range(E): out.append(f"    v_mul_f32 v{h[i+4]}, v{a[i]}, v{t[i]}")
        for i in range(E): out.append(f"    v_mul_f32 v{o[i]}, v{w[0]}, v{h[i]}")
        for j in range(1,5):
            for i in range(E): out.append(f"    v_fmac_f32 v{o[i]}, v{w[j]}, v{h[i+j]}")
        for i in range(E): out.append(f"    v_exp_f32 v{t[i]}, v{o[i]}")
        for i in range(E): out.append(f"    v_fma_f32 v{t[i]}, v{t[i]}, s30, s30")
        for i in range(E): out.append(f"    v_rcp_f32 v{t[i]}, v{t[i]}")
        for i in range(E): out.append(f"    v_mul_f32 v{o[i]}, v{o[i]}, v{t[i]}")
        for i in range(0,E,2): out.append(f"    v_cvt_pk_bf16_f32 v{70+i}, v{o[i]}, v{o[i+1]}")
    else:
        for i in range(0,E,2): out.append(f"    v_pk_mul_f32 v[{t[i]}:{t[i]+1}], v[{b[i]}:{b[i]+1}], v[{72}:{73}]")
        for i in range(E): out.append(f"    v_exp_f32 v{t[i]}, v{t[i]}")
        for i in range(0,E,2): out.append(f"    v_pk_add_f32 v[{t[i]}:{t[i]+1}], v[{t[i]}:{t[i]+1}], v[74:75]")
        for i in range(E): out.append(f"    v_rcp_f32 v{t[i]}, v{t[i]}")
        for i in range(0,E,2): out.append(f"    v_pk_mul_f32 v[{h[i+4]}:{h[i+4]+1}], v[{a[i]}:{a[i]+1}], v[{t[i]}:{t[i]+1}]")
        for i in range(0,E,2): out.append(f"    v_pk_mul_f32 v[{o[i]}:{o[i]+1}], v[{w[0]}:{w[0]+1}], v[{h[i]}:{h[i]+1}]")
        for j in range(1,5):
            for i in range(0,E,2): out.append(f"    v_pk_fma_f32 v[{o[i]}:{o[i]+1}], v[{w[j]}:{w[j]+1}], v[{h[(i+j)&~1]}:{h[(i+j)&~1]+1}], v[{o[i]}:{o[i]+1}]")
        for i in range(E): out.append(f"    v_exp_f32 v{t[i]}, v{o[i]}")
        for i in range(0,E,2): out.append(f"    v_pk_fma_f32 v[{t[i]}:{t[i]+1}], v[{t[i]}:{t[i]+1}], v[72:73], v[72:73]")
        for i in range(E): out.append(f"    v_rcp_f32 v{t[i]}, v{t[i]}")
        for i in range(0,E,2): out.append(f"    v_pk_mul_f32 v[{o[i]}:{o[i]+1}], v[{o[i]}:{o[i]+1}], v[{t[i]}:{t[i]+1}]")
        for i in range(0,E,2): out.append(f"    v_cvt_pk_bf16_f32 v{70+i}, v{o[i]}, v{o[i+1]}")
    return "\n".join(out)

if __name__ == "__main__":
    files = []
    def emit(tag, *a, **kw):
        n = f"mb_{tag}_kernel"
        open(f"mb/{tag}.s", "w").write(kernel(n, *a, **kw))
        files.append(f"mb/{tag}.s")
    for kind in ["fma","fmac","exp","rcp","pkfma","pkmul","dot2","dot2c","cvt"]:
        emit(f"v1_{kind}", valu_body(kind), "", 1000, 0)
        emit(f"v2_{kind}", valu_body(kind), valu_body(kind), 1000, 1000)
    emit("m_alone", mfma_body(6), "", 1000, 0)
    emit("m_both", mfma_body(6), mfma_body(6), 1000, 1000)
    emit("e_alone", epi_body(), "", 1000, 0)
    emit("epk_alone", epi_body(True), "", 1000, 0)
    for pa, pb in [(0,0),(1,0),(0,1)]:
        emit(f"me_{pa}{pb}", mfma_body(6), epi_body(), 1000, 700, prioA=pa, prioB=pb)
        emit(f"em_{pa}{pb}", epi_body(), mfma_body(6), 700, 1000, prioA=pa, prioB=pb)
        emit(f"mepk_{pa}{pb}", mfma_body(6), epi_body(True), 1000, 700, prioA=pa, prioB=pb)
    emit("m_dot2", mfma_body(6, "    v_dot2c_f32_bf16 v5#, v80, v64"), "", 1000, 0)
    emit("m_dot2_e", mfma_body(6, "    v_dot2c_f32_bf16 v5#, v80, v64"), epi_body(), 1000, 700, prioA=1)
    emit("m_tr_e", mfma_body(6, tr=True), epi_body(), 1000, 700, prioA=1)
    print(" ".join(files))
```

```python
import sys, io, contextlib
from gen_issue import *
files=[]
def emit(tag, *a, **kw):
    n = f"mb_{tag}_kernel"
    open(f"mb/{tag}.s", "w").write(kernel(n, *a, **kw))
    files.append(f"mb/{tag}.s")
def m16(chain=1, extra=None, nds=12):
    out=[]; k=0
    for i in range(32):
        acc = 128 + 4*(i//chain*chain)
        a = i % 8; b = i // 8
        out.append(f"    v_mfma_f32_16x16x32_bf16 v[{acc}:{acc+3}], v[{16+4*a}:{19+4*a}], v[{48+4*b}:{51+4*b}], v[{acc}:{acc+3}]")
        if i % 2 == 0 and i//2 < nds: out.append(f"    ds_read_b128 v[{64+4*(i//2)}:{67+4*(i//2)}], v4 offset:{(i//2%6)*8192}")
        if extra and i % 8 == 7: out.append(extra.replace("#", str(b)))
    out.append("    s_waitcnt lgkmcnt(0)")
    return "\n".join(out)
def epi8(E=8):
    out = []
    b = [16+i for i in range(E)]; a = [24+i for i in range(E)]; t = [32+i for i in range(E)]; h=[40+i for i in range(E+4)]; o=[56+i for i in range(E)]
    w = [64,65,66,67,68]
    for i in range(E): out.append(f"    v_mul_f32 v{t[i]}, s30, v{b[i]}")
    for i in range(E): out.append(f"    v_exp_f32 v{t[i]}, v{t[i]}")
    for i in range(E): out.append(f"    v_add_f32 v{t[i]}, 1.0, v{t[i]}")
    for i in range(E): out.append(f"    v_rcp_f32 v{t[i]}, v{t[i]}")
    for i in range(E): out.append(f"    v_mul_f32 v{h[i+4]}, v{a[i]}, v{t[i]}")
    for i in range(E): out.append(f"    v_mul_f32 v{o[i]}, v{w[0]}, v{h[i]}")
    for j in range(1,5):
        for i in range(E): out.append(f"    v_fmac_f32 v{o[i]}, v{w[j]}, v{h[i+j]}")
    for i in range(E): out.append(f"    v_exp_f32 v{t[i]}, v{o[i]}")
    for i in range(E): out.append(f"    v_fma_f32 v{t[i]}, v{t[i]}, s30, s30")
    for i in range(E): out.append(f"    v_rcp_f32 v{t[i]}, v{t[i]}")
    for i in range(E): out.append(f"    v_mul_f32 v{o[i]}, v{o[i]}, v{t[i]}")
    for i in range(0,E,2): out.append(f"    v_cvt_pk_bf16_f32 v{70+i}, v{o[i]}, v{o[i+1]}")
    return out
def interleave(lst):
    T=[l for l in lst if "exp" in l or "rcp" in l]; P=[l for l in lst if l not in T]
    out=[];
    import math
    n=len(T);
    for i in range(n):
        out.append(T[i])
        lo=len(P)*i//n; hi=len(P)*(i+1)//n
        out+=P[lo:hi]
    return out
emit("a_m16", m16(), "", 500, 0)
emit("a_e8", "\n".join(epi8()), "", 300, 0)
emit("a_e8i", "\n".join(interleave(epi8())), "", 300, 0)
emit("a_e8e8", "\n".join(epi8()), "\n".join(epi8()), 300, 300)
emit("a_e8ie8i", "\n".join(interleave(epi8())), "\n".join(interleave(epi8())), 300, 300)
for kind in ["fma","fmac","exp","cvt"]:
    emit(f"b_m16_{kind}", m16(), valu_body(kind), 500, 500)
emit("b_m16c2_fmac", m16(2), valu_body("fmac"), 500, 500)
emit("b_m16c2_exp", m16(2), valu_body("exp"), 500, 500)
for pa,pb in [(0,0),(1,0),(0,1)]:
    emit(f"c_m16_e8_{pa}{pb}", m16(), "\n".join(epi8()), 500, 200, prioA=pa, prioB=pb)
    emit(f"c_m16_e8i_{pa}{pb}", m16(), "\n".join(interleave(epi8())), 500, 200, prioA=pa, prioB=pb)
    emit(f"c_e8i_m16_{pa}{pb}", "\n".join(interleave(epi8())), m16(), 200, 500, prioA=pa, prioB=pb)
emit("d_m16_444", m16(extra="    v_mfma_f32_4x4x4_16b_bf16 v[8:11], v[16:17], v[48:49], v[8:11] cbsz:2 abid:1\n    v_mfma_f32_4x4x4_16b_bf16 v[12:15], v[18:19], v[50:51], v[12:15] cbsz:2 abid:1"), "", 500, 0)
emit("d_m16_smf", m16(extra="    v_smfmac_f32_16x16x64_bf16 v[8:11], v[16:19], v[48:55], v7"), "", 500, 0)
emit("d_m16_x16", m16(extra="    v_mfma_f32_16x16x32_bf16 v[8:11], v[16:19], v[48:51], v[8:11]"), "", 500, 0)
print(" ".join(files))
```

```python
import io, contextlib
with contextlib.redirect_stdout(io.StringIO()):
    from gen_issue2 import *
files.clear()
def rep(s, n=32): return "\n".join([s.replace("#", str(128+4*(i%8))).replace("$", str(131+4*(i%8))) for i in range(n)])
ops = {"m32": "    v_mfma_f32_16x16x32_bf16 v[#:$], v[16:19], v[48:51], v[#:$]",
       "m16": "    v_mfma_f32_16x16x16_bf16 v[#:$], v[16:17], v[48:49], v[#:$]",
       "s64": "    v_smfmac_f32_16x16x64_bf16 v[#:$], v[16:19], v[48:55], v7",
       "s32": "    v_smfmac_f32_16x16x32_bf16 v[#:$], v[16:17], v[48:51], v7"}
for k, v in ops.items():
    emit(f"u_{k}", rep(v), "", 500, 0)
    emit(f"u_{k}_fmac", rep(v), valu_body("fmac"), 500, 300)
print(" ".join(files))
```

```python
import sys

NAME = "standalone__conformer_conv_module__speech"
P = dict(
    stamps=0,
    p0=2,
    xpat="10",
    pace=2,
    exch=1,
    inpos=560,
    npre=3,
    stflag="sc1", xflag="nt",
    sched1="D.Vt.u.Ba.b.m.o.",
    sched0="D.Vt.u.Ba.b.X.mo.",
    sched7="a.eb.f.gS.ph.wT.qy.rs",
    hb=2,
    hpos=900,
    ypos=460,
    s1g=12, s1pos=230,
    cil=2, cpf=1, tsp=6, tlag=10, gprio=2, otlb=0,
    t0st=0, noast=0, nodma=0, bench=0, probe=-2, pgrp=0, pwg=-1, plen=10000,
)
out_path = None
for a in sys.argv[1:]:
    if "=" in a:
        k, v = a.split("=", 1)
        assert k in P, k
        P[k] = int(v) if (v.lstrip("-").isdigit() and not isinstance(P[k], str)) else v
    else:
        out_path = a

NWG = 250
S_X, S_W1, S_W2, S_OUT, S_DW, S_WS, S_DBG = 4, 8, 12, 16, 20, 24, 28
sW, sGRP, sPR, sRB, sXG, sROW, sOFF, sCOL, sC = 32, 33, 34, 35, 36, 37, 38, 39, 40
sK = 41
sRET = 42
sE0, sE15, sEB = 44, 46, 48
sIDX = 50
sU = 51
sT0, sT1, sT2, sT3 = 52, 53, 54, 55
sPC = 56
sSPIN = 58
sXL = 59
sST = 60
sDUM = 94
sTB = 96
sINL, sINR = 97, 3
sAT = 98
sM = 100
sNB = 0
vA0, vA1, vB0, vB1, vW, vL, vSW, vX = 0, 1, 2, 3, 4, 5, 6, 7
AF = 8
BB = [32, 64]
SS = 96
ACC = 128
OOB = 0x40000000

L = []
def e(s): L.append("    " + s)
def lab(s): L.append(s + ":")
def cm(s): L.append("    ; " + s)
def sr(b, n): return f"s[{b}:{b+n-1}]"
def vr(b, n): return f"v[{b}:{b+n-1}]"

class Q:
    def __init__(self, name, mx): self.name, self.mx, self.q = name, mx, []
    def push(self, tag): self.q.append(tag)
    def wait(self, tag):
        if tag not in self.q: return
        i = len(self.q) - 1 - self.q[::-1].index(tag)
        n = min(len(self.q) - 1 - i, self.mx)
        e(f"s_waitcnt {self.name}({n})")
        self.q = self.q[len(self.q)-n:]
    def drain(self):
        e(f"s_waitcnt {self.name}(0)"); self.q = []
    def set(self, tags): self.q = list(tags)
LG = Q("lgkmcnt", 15)
VM = Q("vmcnt", 63)

def stamp(i, force=False):
    if P["t0st"] and 4 <= i <= 12 and not force: return
    if P["stamps"] == 1: e(f"s_memrealtime {sr(sST+2*i,2)}")
    if P["stamps"] == 2: e(f"s_memtime {sr(sST+2*i,2)}")

def acc1(ab, F, tb): return ACC + 32*(2*ab+F) + 4*tb
def acc2(tb, F): return ACC + 16*tb + 4*F
def afrag(g, ks): return AF + 8*(g % 3) + 4*ks
def bfrag(buf, f4, ks): return BB[buf] + 8*f4 + 4*ks

W2ROW = [0, 64, 256, 320, 128, 192, 384, 448]
def w_m0(kind, slot, always=False):
    if kind == 2: e(f"s_add_u32 m0, s{sRB}, {1024*slot - 64*(slot & 1)}")
    elif slot % 4 == 0 or always: e(f"s_add_u32 m0, s{sRB}, {4096*(slot >> 2)}")
def w_off(kind, tile, slot, col=sCOL):
    ks, m, ab = slot >> 2, (slot >> 1) & 1, slot & 1
    if ab: return
    nx = 0
    if tile == 8: tile, nx = 0, (0 if col != sCOL else 256*kind)
    if kind == 2: e(f"s_add_u32 s{sOFF}, s{col}, {nx + (W2ROW[tile] + 32*ks + 16*m)*1024}")
    else: e(f"s_add_u32 s{sOFF}, s{col}, {nx + tile*131072 + ks*65536 + m*6144}")
def w_dma(kind, tile, slot, prep=True, vo=vW):
    ks, m, ab = slot >> 2, (slot >> 1) & 1, slot & 1
    if prep: w_m0(kind, slot); w_off(kind, tile, slot)
    if kind == 1: e(f"buffer_load_dwordx4 v{vo}, {sr(S_W1,4)}, s{sOFF} offen offset:{2048*m+1024*ab} lds")
    else: e(f"buffer_load_dwordx4 v{vo}, {sr(S_W2,4)}, s{sOFF} offen offset:{64*ab} lds")
    VM.push(("w", tile, slot))
def w_read(tile, slot, which=(0, 1)):
    ks, m, ab = slot >> 2, (slot >> 1) & 1, slot & 1
    for F in which:
        d = bfrag(tile & 1, 2*ab+F, ks) + 2*m
        e(f"ds_read_b64_tr_b16 {vr(d,2)}, v{vB0+F} offset:{1024*slot}")
        LG.push(("wr", tile, slot))
def a_read(kind, g, ks):
    N, blk = g >> 3, g & 7
    if kind == 1: e(f"ds_read_b128 {vr(afrag(g,ks),4)}, v{vA0+ks} offset:{(N&3)*16384+blk*2048}")
    else: e(f"ds_read_b128 {vr(afrag(g,ks),4)}, v{vA0} offset:{(N&3)*16384+ks*8192+blk*1024}")
    LG.push(("a", g))
def x_dma(kc, u):
    e(f"s_add_u32 m0, s{sXL}, {kc*16384 + u*4096}")
    e(f"s_add_u32 s{sT0}, s{sXG}, {kc*128 + u*2048}")
    e(f"buffer_load_dwordx4 v{vX}, {sr(S_X,4)}, s{sT0} offen {P['xflag']} lds")
    VM.push(("x", kc))
def s_write(base, tb, ps):
    e(f"ds_write_b128 v{vSW}, {vr(base+4*tb,4)} offset:{32768*ps+1024*tb}")
    LG.push("sw")

def mfma_seq(kind, N, blk):
    g = 8*N + blk
    seq = []
    for f4 in range(4):
        order = (0, 1) if f4 % 2 == 0 else (1, 0)
        for j, ks in enumerate(order):
            d = acc1(f4 >> 1, f4 & 1, blk) if kind == 1 else acc2(blk, f4)
            c = "0" if (N == 0 and j == 0) else vr(d, 4)
            seq.append(f"v_mfma_f32_16x16x32_bf16 {vr(d,4)}, {vr(bfrag(N&1,f4,ks),4)}, {vr(afrag(g,ks),4)}, {c}")
    return seq

outl = []
def cond_barrier(tag, on):
    e(f"s_cbranch_vcc{'nz' if on else 'z'} L_bar_{tag}")
    lab(f"L_barret_{tag}")
    outl.append(f"L_bar_{tag}:\n    s_barrier\n    s_branch L_barret_{tag}")

def dma_of(g, nxt):
    N, blk = g >> 3, g & 7
    pt, ps = ((N+2, blk-1) if blk >= 1 else (N+1, 7))
    if pt > 8 or g == 0 or (pt == 8 and not nxt): return None
    return pt, ps

T0 = dict(todo=[], published=0, bars=[])
def g_block(kind, N, blk, var=""):
    g = 8*N + blk
    g2 = g + 2
    t0 = var == "t0"
    nxt = var != "B"
    M = mfma_seq(kind, N, blk)
    LG.wait(("wr", (g+7) >> 3, (g+7) & 7)); LG.wait(("a", g))
    def tgt(d):
        return (2, sT3, vX) if (var == "w2" and d[0] == 8) else (kind, sCOL, vW)
    def act(c):
        if c == "D":
            d = dma_of(g, nxt)
            if d and not P["nodma"]: w_dma(tgt(d)[0], *d, prep=False, vo=tgt(d)[2])
            if N == 7 and blk == 0: e("s_setprio 3")
            if N == 7 and blk == P["hb"] and nxt:
                VM.drain(); e("s_barrier")
        elif c == "m":
            d = dma_of(g+1, nxt)
            if d: w_m0(tgt(d)[0], d[1], t0)
        elif c == "o":
            d = dma_of(g+1, nxt)
            if d: w_off(tgt(d)[0], *d, col=tgt(d)[1])
        elif c == "V":
            if N+1 <= 7: VM.wait(("w", N+1, blk))
        elif c in "tu":
            if N+1 <= 7: w_read(N+1, blk, ("tu".index(c),))
        elif c in "efgh":
            if blk >= 1: o_cvt(blk-1, "efgh".index(c))
        elif c in "pq":
            if blk >= 1: o_swap(blk-1, "pq".index(c))
        elif c in "wy":
            if blk >= 1: o_write(blk-1, "wy".index(c), (blk-1) & 3)
        elif c in "rs":
            if blk >= 1: o_read(blk-1, "rs".index(c), (blk-1) & 3)
        elif c in "ST":
            if blk >= 2: o_store(blk-2, "ST".index(c))
        elif c == "X":
            for _ in range(int(P["xpat"][g % len(P["xpat"])])):
                if T0["todo"]: x_dma(*T0["todo"].pop(0))
        elif c == "B":
            if g2 < 64 and blk == 6:
                if t0 and T0["published"] < N+1:
                    assert all(kc > N+1 for kc, _ in T0["todo"]), "x chunk issued too late"
                    VM.wait(("x", N+1))
                    c2 = N+1
                    while c2+1 <= 7 and c2+1 >= P["p0"] and ("x", c2+1) not in VM.q and all(kc > c2+1 for kc, _ in T0["todo"]): c2 += 1
                    T0["bars"].append(N+1); T0["published"] = c2
                    e("s_barrier")
                if kind == 2 and N == 5: cond_barrier("s2", 1)
                if N == 3:
                    e(f"v_add_u32 v{vA0}, 0x10000, v{vA0}")
                    if kind == 1: e(f"v_add_u32 v{vA1}, 0x10000, v{vA1}")
            if kind == 1 and g == 32 and not t0: cond_barrier("y", 1)
            if kind == 2 and g == P["s1g"]: cond_barrier("s1", 1)
            if kind == 2 and g == 8: cond_barrier("z", 0)
        elif c in "ab":
            if g2 < 64: a_read(kind, g2, "ab".index(c))
    gaps = P["sched0" if t0 else "sched7" if (var == "B" and N == 7) else "sched1"].split(".")
    assert len(gaps) == 8
    for i in range(8):
        e(M[i])
        for c in gaps[i]: act(c)

def g_entry():
    VM.set([("w", 1, s) for s in range(8)])
    LG.set([("a", 0)]*2 + [("a", 1)]*2)
    e(f"s_setprio {P['gprio']}")

def gen_G1():
    lab("L_G1")
    g_entry()
    for N in range(6):
        lab(f"L_G1_step{N}")
        for b in range(8): g_block(1, N, b)
    e("s_cbranch_vccnz L_G1_w2")
    st = (list(LG.q), list(VM.q))
    for var in ("", "w2"):
        if var: lab("L_G1_w2")
        LG.set(st[0]); VM.set(st[1])
        for N in range(6, 8):
            if not var: lab(f"L_G1_step{N}")
            for b in range(8): g_block(1, N, b, var)
        if not var:
            e(f"v_subrev_u32 v{vA0}, 0x10000, v{vA0}")
            e(f"v_subrev_u32 v{vA1}, 0x10000, v{vA1}")
        e("s_setprio 0")
        e(f"s_setpc_b64 {sr(sRET,2)}")

def gen_G1T0():
    lab("L_G1T0")
    g_entry()
    T0["todo"] = [(kc, u) for kc in range(P["p0"], 8) for u in range(4)]
    N = 0
    while T0["published"] < 7:
        for b in range(8): g_block(1, N, b, "t0")
        if P["t0st"] == 1: stamp(4+N, True)
        N += 1
    call(f"L_G1_step{N}")

def gen_G2():
    assert P["s1g"] <= 14
    lab("L_G2")
    g_entry()
    for N in range(6):
        for b in range(8): g_block(2, N, b)
    e("s_cbranch_vccz L_G2_B")
    st = (list(LG.q), list(VM.q))
    for var in "AB":
        if var == "B": lab("L_G2_B")
        LG.set(st[0]); VM.set(st[1])
        for N in range(6, 8):
            for b in range(8): g_block(2, N, b, var)
        e("s_setprio 0")
        gen_out(var)

def first_reads(kind):
    for g in range(2):
        for ks in range(2): a_read(kind, g, ks)
def takeover_ops(kind, sp=None):
    sp, lag = (P["tsp"] if sp is None else sp), P["tlag"]
    ops = []
    for s in range(8):
        ops.append((sp*s, lambda s=s: (VM.wait(("w", 0, s)), w_read(0, s, (0,)))))
        ops.append((sp*s+2, lambda s=s: w_read(0, s, (1,))))
        ops.append((lag+sp*s-2, lambda s=s: (w_m0(kind, s), w_off(kind, 1, s))))
        ops.append((lag+sp*s, lambda s=s: (LG.wait(("wr", 0, s)), w_dma(kind, 1, s, prep=False))))
    return ops
def slots(lst): return sum(2 if i.startswith(("v_exp", "v_rcp")) else 0 if i.startswith(("s_", "v_mfma", "v_smfmac")) else 1 for i in lst)
def merge(valu, ops):
    ops = sorted(enumerate(ops), key=lambda t: (t[1][0], t[0]))
    pos = 0; k = 0
    for ins in valu:
        while k < len(ops) and ops[k][1][0] <= pos: ops[k][1][1](); k += 1
        e(ins); pos += slots([ins])
    while k < len(ops): ops[k][1][1](); k += 1
def takeover(kind):
    LG.set([])
    merge([], takeover_ops(kind, 3))
def stouch_base(kind, col):
    e(f"s_lshl_b32 s{sTB}, s{sIDX}, 2")
    e(f"s_add_u32 s{sTB}, s{sTB}, s{sPR}")
    e(f"s_mul_i32 s{sTB}, s{sTB}, {5*(2048 if kind == 1 else 1024)}")
    e(f"s_add_u32 s{sTB}, s{sTB}, {col}")
def stouch(kind, i):
    r, l = i >> 2, i & 3
    off = r*2048 + (l & 1)*128 + (l >> 1)*1024 if kind == 1 else r*1024 + l*128
    e(f"s_buffer_load_dwordx2 {sr(sDUM,2)}, {sr(S_W1 if kind == 1 else S_W2,4)}, s{sTB} offset:{off+60}")

def AS(F): return 64 + 4*F
def AD(F): return 72 + 2*F
IDX, vD, vD4, vSH, vEO, vEI, vTM = 76, 77, 78, 79, 80, 81, 82
ET = 84
def HP(F, tb): return ACC + 20 + 32*F + 2*(tb+2)
def OB(k): return ACC + 8*k
S2 = ACC + 96
def glu(tb):
    els = [(acc1(0, F, tb)+r, acc1(1, F, tb)+r) for F in range(2) for r in range(4)]
    o = []
    for a, b in els: o.append(f"v_mul_f32 v{b}, s{sC}, v{b}")
    for a, b in els: o.append(f"v_exp_f32 v{b}, v{b}")
    for a, b in els: o.append(f"v_fma_f32 v{b}, v{b}, s{sK}, s{sK}")
    for a, b in els: o.append(f"v_rcp_f32 v{b}, v{b}")
    for a, b in els: o.append(f"v_mul_f32 v{b}, v{a}, v{b}")
    return o
def pack(tb):
    return [f"v_cvt_pk_bf16_f32 v{HP(F,tb)+d}, v{acc1(1,F,tb)+2*d}, v{acc1(1,F,tb)+2*d+1}" for F in range(2) for d in range(2)]
def conv(tb, k, prio):
    o = ["s_setprio 3"]
    for F in range(2): o.append(f"v_mfma_f32_16x16x16_bf16 {vr(OB(k)+4*F,4)}, {vr(AD(F),2)}, {vr(HP(F,tb+2),2)}, 0")
    for F in range(2): o.append(f"v_smfmac_f32_16x16x64_bf16 {vr(OB(k)+4*F,4)}, {vr(AS(F),4)}, {vr(HP(F,tb-2),8)}, v{IDX}")
    o.append(f"s_setprio {prio}")
    return o
def silu(tb, k, dst):
    o = []
    for i in range(8): o.append(f"v_exp_f32 v{ET+i}, v{OB(k)+i}")
    for i in range(8): o.append(f"v_fma_f32 v{ET+i}, v{ET+i}, s{sC}, s{sC}")
    for i in range(8): o.append(f"v_rcp_f32 v{ET+i}, v{ET+i}")
    for i in range(8): o.append(f"v_mul_f32 v{ET+i}, v{OB(k)+i}, v{ET+i}")
    for i in range(4): o.append(f"v_cvt_pk_bf16_f32 v{dst+4*tb+i}, v{ET+2*i}, v{ET+2*i+1}")
    return o
def mask(lo, hi): return [f"s_mov_b32 s{sM}, {lo:#x}", f"s_mov_b32 s{sM+1}, {hi:#x}"]

def gen_E(tag, dst, side):
    VM.set([]); LG.set([])
    e(f"s_add_u32 s{sT2}, s{sCOL}, 4096")
    e(f"s_lshl_b32 s{sT0}, s{sU}, 8")
    e(f"s_lshl_b32 s{sT1}, s2, 12")
    e(f"s_add_u32 s{sT1}, s{sT1}, s{sT0}")
    e(f"s_add_u32 s{sT0}, s{sT1}, 4096")
    v = []; ops = []; marks = {}
    v.append(f"v_and_b32 v{vD4}, 15, v{vL}")
    v.append(f"v_lshlrev_b32 v{vD4}, 1, v{vD4}")
    v.append(f"v_lshrrev_b32 v{vD}, 5, v{vL}")
    v.append(f"v_lshl_add_u32 v{vD}, v{vD}, 11, v{vD4}")
    k = 0
    for F in range(2):
        for b in range(3):
            d, a, so, off = (AS(F)+b, vD, sCOL, 1024*b+32*F) if b < 2 else (AD(F), vD4, sT2, 32*F)
            ops.append((8+36*k, lambda d=d, a=a, so=so, off=off: (
                e(f"buffer_load_ushort v{d}, v{a}, {sr(S_DW,4)}, s{so} offen offset:{off}"), VM.push("dw"))))
            k += 1
    v += glu(6) + glu(1) + pack(1) + pack(6) + glu(7) + pack(7)
    v.append(f"v_and_b32 v{vTM}, 8, v{vL}")
    v.append(f"v_lshlrev_b32 v{vTM}, 3, v{vTM}")
    v.append(f"v_and_or_b32 v{vEO}, v{vL}, 48, v{vTM}")
    v.append(f"v_mov_b32 v{vTM}, s{sINL}")
    def publish(F, dr):
        if not P["exch"]: return
        e(f"s_mov_b64 exec, {sr(sE15 if dr else sE0,2)}")
        e(f"buffer_store_dwordx4 {vr(HP(F,6 if dr else 0),4)}, v{vEO}, {sr(S_WS,4)}, s{sT0} offen offset:{128*F} sc1"); VM.push("pub")
        e("s_mov_b64 exec, -1")
    p = slots(v)
    ops += [(p, lambda: publish(0, 1)), (p+12, lambda: publish(1, 1))]
    v += glu(0) + pack(0)
    p = slots(v)
    ops += [(p, lambda: publish(0, 0)), (p+12, lambda: publish(1, 0))]
    v.append(f"v_mov_b32 v{vEI}, s{sINR}")
    v.append(f"v_cndmask_b32 v{vEI}, v{vEI}, v{vTM}, {sr(sE0,2)}")
    v.append(f"v_and_or_b32 v{vEI}, v{vL}, 48, v{vEI}")
    v.append(f"v_and_b32 v{IDX}, 3, v{vL}")
    v.append(f"v_mul_u32_u24 v{IDX}, 0x5555, v{IDX}")
    v.append(f"v_lshlrev_b32 v{vSH}, 4, v{vL}")
    v += glu(5) + pack(5)
    marks["g5"] = slots(v)
    v += glu(2) + pack(2)
    ops.append((slots(v), lambda: VM.wait("dw")))
    for F in range(2): v.append(f"v_lshlrev_b32 v{AD(F)}, v{vSH}, v{AD(F)}")
    v += mask(0xf00000f0, 0xf00000f0)
    for F in range(2):
        for b in range(2): v.append(f"v_cndmask_b32 v{AS(F)+2+b}, 0, v{AS(F)+b}, {sr(sM,2)}")
    v += mask(0x0f00000f, 0x0f00000f)
    for F in range(2):
        for b in range(2): v.append(f"v_cndmask_b32 v{AS(F)+b}, 0, v{AS(F)+b}, {sr(sM,2)}")
    v += mask(0x00c0000c, 0xc0000c00)
    for F in range(2): v.append(f"v_cndmask_b32 v{AD(F)+1}, 0, v{AD(F)}, {sr(sM,2)}")
    v += mask(0x00300003, 0x30000300)
    for F in range(2): v.append(f"v_cndmask_b32 v{AD(F)}, 0, v{AD(F)}, {sr(sM,2)}")
    v += glu(4) + pack(4) + glu(3) + pack(3)
    marks["glu"] = slots(v)
    def in_loads():
        return [f"buffer_load_dwordx4 {vr(HP(F,-2),4)}, v{vEI}, {sr(S_WS,4)}, s{sT1} offen offset:{128*F} sc1" for F in range(2)]
    def inbound():
        e(f"s_mov_b64 exec, {sr(sEB,2)}")
        for i in in_loads(): e(i); VM.push("inb")
        e("s_mov_b64 exec, -1")
    assert P["inpos"] >= marks["g5"]
    ops.append((P["inpos"], inbound))
    def poll():
        VM.wait("inb")
        e(f"s_mov_b64 exec, {sr(sEB,2)}")
        e(f"s_mov_b32 s{sSPIN}, 0x8000")
        lab(f"L_poll{tag}")
        h0, h1 = HP(0, -2), HP(1, -2)
        e(f"v_max3_u32 v{vTM}, v{h0}, v{h0+1}, v{h0+2}")
        e(f"v_max3_u32 v{vTM+1}, v{h1}, v{h1+1}, v{h1+2}")
        e(f"v_max3_u32 v{vTM}, v{vTM}, v{h0+3}, v{h1+3}")
        e(f"v_max_u32 v{vTM}, v{vTM}, v{vTM+1}")
        e(f"v_cmp_ne_u32 vcc, -1, v{vTM}")
        e("s_nop 1")
        e("s_cmp_eq_u64 vcc, exec")
        e(f"s_cbranch_scc0 L_repoll{tag}")
        lab(f"L_polled{tag}")
        e("s_mov_b64 exec, -1")
        e(f"s_mov_b64 vcc, {sr(sE15,2)}")
        outl.append(f"L_repoll{tag}:\n    s_sub_u32 s{sSPIN}, s{sSPIN}, 1\n    s_cbranch_scc1 L_polled{tag}\n    "
                    + "\n    ".join(in_loads()) + f"\n    s_waitcnt vmcnt(0)\n    s_branch L_poll{tag}")
    halo = []
    for F in range(2):
        for i in range(4): halo.append(f"v_cndmask_b32_dpp v{HP(F,8)+i}, v{HP(F,0)+i}, v{HP(F,-2)+i}, vcc row_shl:1 row_mask:0xf bank_mask:0xf bound_ctrl:1")
    for F in range(2):
        for i in range(4): halo.append(f"v_mov_b32_dpp v{HP(F,-2)+i}, v{HP(F,6)+i} row_shr:1 row_mask:0xf bank_mask:0xf")
    order = [2, 3, 4, 5, 6, 7, 0, 1]
    pr = lambda: 1 if slots(v) >= P["hpos"] else 0
    if P["cil"]:
        v += ["s_nop 0"] + conv(order[0], 0, 0) + ["s_nop 6"]
        for n, tb in enumerate(order):
            if n == P["npre"]:
                assert slots(v) > P["inpos"] and n <= 3
                ops.append((slots(v), poll))
                v += halo
            sl = silu(tb, n & 1, dst)
            if n+1 < 8:
                c = conv(order[n+1], (n+1) & 1, pr())
                st = P["cil"]
                sl = [c[0], c[1]] + sl[0:st] + [c[2]] + sl[st:2*st] + [c[3]] + sl[2*st:3*st] + [c[4], c[5]] + sl[3*st:]
            v += sl
            marks[tb] = slots(v)
    else:
      v += ["s_nop 0"] + conv(order[0], 0, 0) + conv(order[1], 1, 0) + ["s_nop 1"]
      for n, tb in enumerate(order):
        v += silu(tb, n & 1, dst)
        marks[tb] = slots(v)
        if n == P["npre"]-1:
            assert slots(v) > P["inpos"] and n <= 2
            ops.append((slots(v), poll))
            v += halo
        if n+2 < 8: v += conv(order[n+2], n & 1, pr())
    marks["end"] = slots(v)
    marks["order"] = order
    if P["t0st"] == 2 and tag in "ac":
        for k in range(7): ops.append((160*k, lambda k=k: stamp(4+k, True)))
    merge(v, ops + side(marks))

def shift(ops, p): return [(q+p, f) for q, f in ops]
def gen_E1():
    lab("L_E1")
    def side(m):
        h = P["hpos"]
        def hand():
            stamp(5)
            e("s_barrier")
            e("s_setprio 1")
            e(f"s_add_u32 s{sCOL}, s{sCOL}, 512")
        ops = [(9+30*i, lambda i=i: stouch(1, i)) for i in range(20)]
        ops += [(h-40+8*k, lambda k=k: a_read(1, k >> 1, k & 1)) for k in range(4)]
        return ops + [(h, hand)] + shift(takeover_ops(1), h)
    gen_E("a", SS, side)
    e(f"s_add_u32 s{sU}, s{sU}, 8")
    e(f"s_cmp_eq_u32 s{sGRP}, 1")
    e("s_cselect_b64 vcc, -1, 0")
    stamp(11)
def gen_E2A():
    def side(m):
        h, y = P["hpos"], P["ypos"]
        def hand():
            LG.drain()
            stamp(7)
            e("s_barrier")
            e("s_setprio 1")
            e(f"s_lshl_b32 s{sCOL}, s{sW}, 7")
        ops = [(9+24*i, lambda i=i: stouch(2, i)) for i in range(20)]
        ops.append((y, lambda: e("s_barrier")))
        ops += [(y+6+26*k, lambda k=k: s_write(SS, k, 0)) for k in range(8)]
        assert y+6+26*7 < h
        ops += [(max(m[tb], y)+2, lambda tb=tb: s_write(S2, tb, 1)) for tb in m["order"]]
        ops += [(h+4+6*k, lambda k=k: a_read(2, k >> 1, k & 1)) for k in range(4)]
        return ops + [(h, hand)] + shift(takeover_ops(2), h)
    gen_E("b", S2, side)
def gen_E2B():
    def side(m):
        ops = [(P["s1pos"]+5+20*i, lambda i=i: stouch(2, i)) for i in range(20)]
        ops += [(14+22*k, lambda k=k: s_write(SS, k, 0)) for k in range(8)]
        assert 14+22*7 < P["s1pos"] < m["glu"]
        ops.append((P["s1pos"], lambda: (LG.wait("sw"), e("s_barrier"))))
        ops += [(m[tb]+2, lambda tb=tb: s_write(SS, tb, 1)) for tb in m["order"]]
        return ops
    gen_E("c", SS, side)

def call(l): e(f"s_call_b64 {sr(sRET,2)}, {l}")

def g1_addr():
    e(f"v_lshrrev_b32 v{vB0}, 2, v{vL}")
    e(f"v_lshlrev_b32 v{vB0}, 6, v{vB0}")
    e(f"v_bfe_u32 v{vB1}, v{vL}, 4, 1")
    e(f"v_lshl_add_u32 v{vB0}, v{vB1}, 5, v{vB0}")
    e(f"v_and_b32 v{vB1}, 3, v{vL}")
    e(f"v_lshl_add_u32 v{vB0}, v{vB1}, 3, v{vB0}")
    e(f"v_add_u32 v{vB0}, s{sRB}, v{vB0}")
    e(f"v_xor_b32 v{vB1}, 32, v{vB0}")
    e(f"v_lshrrev_b32 v{vSW}, 4, v{vL}")
    e(f"v_bfe_u32 v{vA1}, v{vL}, 1, 3")
    e(f"v_xor_b32 v{vA1}, v{vA1}, v{vSW}")
    e(f"v_lshlrev_b32 v{vA1}, 4, v{vA1}")
    e(f"v_and_b32 v{vA0}, 15, v{vL}")
    e(f"v_lshl_add_u32 v{vA0}, v{vA0}, 7, v{vA1}")
    e(f"v_xor_b32 v{vA1}, 64, v{vA0}")
    e(f"s_lshl_b32 s{sT2}, s{sGRP}, 2")
    e(f"s_add_u32 s{sT2}, s{sT2}, s{sW}")
    e(f"s_lshl_b32 s{sT2}, s{sT2}, 13")
    e(f"v_lshl_add_u32 v{vSW}, v{vL}, 4, s{sT2}")
def w2_voff(d, t):
    e(f"v_and_b32 v{d}, 48, v{vW}")
    e(f"v_lshrrev_b32 v{t}, 2, v{vL}")
    e(f"v_lshl_add_u32 v{d}, v{t}, 10, v{d}")

OW, OR, OG = SS, SS+2, SS+3
def out_addr(stg):
    t = SS+6
    e(f"v_and_b32 v{OW}, 15, v{vL}")
    e(f"v_lshrrev_b32 v{t}, 5, v{vL}")
    e(f"v_bfe_u32 v{OW+1}, v{vL}, 4, 1")
    e(f"v_lshl_add_u32 v{t}, v{OW+1}, 1, v{t}")
    e(f"v_xor_b32 v{t}, v{t}, v{OW}")
    e(f"v_and_b32 v{t}, 7, v{t}")
    e(f"v_lshlrev_b32 v{t}, 4, v{t}")
    e(f"v_lshl_add_u32 v{OW}, v{OW}, 7, v{t}")
    e(f"v_add_u32 v{OW}, s{stg}, v{OW}")
    e(f"v_xor_b32 v{OW+1}, 64, v{OW}")
    e(f"v_lshrrev_b32 v{OG}, 3, v{vL}")
    e(f"v_xor_b32 v{OR}, v{OG}, v{vL}")
    e(f"v_and_b32 v{OR}, 7, v{OR}")
    e(f"v_lshlrev_b32 v{OR}, 4, v{OR}")
    e(f"v_lshl_add_u32 v{OR}, v{OG}, 7, v{OR}")
    e(f"v_add_u32 v{OR}, s{stg}, v{OR}")
    e(f"v_and_b32 v{t}, 7, v{vL}")
    e(f"v_lshlrev_b32 v{t}, 4, v{t}")
    e(f"v_lshl_add_u32 v{OG}, v{OG}, 13, v{t}")
    e(f"v_add_u32 v{OG+1}, 0x10000, v{OG}")
    e(f"s_add_u32 s{sT0}, s{sROW}, s{sCOL}")
    e(f"s_add_u32 s{sT1}, s{sT0}, 4096")
def o_cvt(tb, k):
    a = acc2(tb, k & 2)
    for i in (2*(k & 1), 2*(k & 1)+1): e(f"v_cvt_pk_bf16_f32 v{a+i}, v{a+2*i}, v{a+2*i+1}")
def o_swap(tb, J):
    a = acc2(tb, 2*J)
    e(f"v_permlane16_swap_b32 v{a}, v{a+2}")
    e(f"v_permlane16_swap_b32 v{a+1}, v{a+3}")
def o_write(tb, J, buf):
    e(f"ds_write_b128 v{OW+J}, {vr(acc2(tb,2*J),4)} offset:{2048*buf}"); LG.push("ow")
def o_read(tb, i, buf):
    e(f"ds_read_b128 {vr(acc2(tb,i),4)}, v{OR} offset:{2048*buf+1024*i}"); LG.push(("or", tb, i))
def o_store(tb, i):
    LG.wait(("or", tb, i))
    e(f"buffer_store_dwordx4 {vr(acc2(tb,i),4)}, v{OG+i}, {sr(S_OUT,4)}, s{sT0 if tb < 4 else sT1} offen offset:{1024*(tb&3)} {P['stflag']}")

def gen_out(var):
    stamp(10)
    if var == "A":
        LG.set([]); VM.set([])
        e(f"s_lshl_b32 s{sT2}, s{sPR}, 12")
        out_addr(sT2)
        for tb in range(8):
            for k in range(4): o_cvt(tb, k)
            o_swap(tb, 0); o_swap(tb, 1)
        e("s_barrier")
        stamp(12)
        for tb in range(8 if P["noast"] < 2 else 0):
            for J in range(2): o_write(tb, J, tb & 1); LG.drain()
            for i in range(2):
                o_read(tb, i, tb & 1)
                if P["pace"]: e(f"s_waitcnt vmcnt({P['pace']-1})")
                if P["noast"]: LG.drain()
                else: o_store(tb, i)
        e("s_branch L_end")
        return
    e("s_nop 1")
    for k in range(4): o_cvt(7, k)
    o_swap(7, 0); o_write(7, 0, 3); o_swap(7, 1); o_write(7, 1, 3)
    o_read(7, 0, 3); o_read(7, 1, 3)
    for tb in (6, 7):
        for i in range(2): o_store(tb, i)
    lab("L_end")
    if P["stamps"]:
        stamp(13)
        e("s_waitcnt vmcnt(0)")
        stamp(14)
        e(f"s_memtime {sr(sST+2*15,2)}")
        e("s_waitcnt lgkmcnt(0)")
        e(f"s_sub_u32 s{sST+30}, s{sST+30}, s{sST+32}")
        if P["probe"] >= -1:
            e(f"s_add_u32 s{sT1}, s{sST}, {P['plen']}")
            if P["probe"] >= 0:
                e(f"s_add_u32 s{sT2}, s{sST+2*P['probe']}, {P['plen']}")
                e(f"s_cmp_eq_u32 s{sGRP}, {P['pgrp']}")
                e(f"s_cselect_b32 s{sT1}, s{sT2}, s{sT1}")
            if P["pwg"] >= 0:
                e(f"s_cmp_eq_u32 s2, {P['pwg']}")
                e(f"s_cselect_b32 s{sT1}, s{sT1}, s{sST}")
            lab("L_probe")
            e(f"s_memrealtime {sr(sPC,2)}")
            e("s_waitcnt lgkmcnt(0)")
            e(f"s_sub_u32 s{sT2}, s{sPC}, s{sT1}")
            e(f"s_cmp_lt_i32 s{sT2}, 0")
            e("s_cbranch_scc1 L_probe")
            e("s_endpgm")
        for i in range(16): e(f"v_mov_b32 v{8+i}, s{sST+2*i}")
        e(f"s_lshl_b32 s{sT0}, s2, 3")
        e(f"s_add_u32 s{sT0}, s{sT0}, s{sW}")
        e(f"s_lshl_b32 s{sT0}, s{sT0}, 6")
        e(f"s_add_u32 s{sT0}, s{sT0}, 0x400000")
        e("v_mov_b32 v0, 0")
        e("s_mov_b64 exec, 1")
        for i in range(4):
            e(f"buffer_store_dwordx4 {vr(8+4*i,4)}, v0, {sr(S_WS,4)}, s{sT0} offen offset:{16*i}")
    e("s_endpgm")

ntouch = [0]
def touch(srd, vreg, shift, base, dst):
    ntouch[0] += 1
    e(f"s_lshl_b32 s{sT2}, s{sIDX}, {shift}")
    e(f"s_add_u32 s{sT2}, s{sT2}, {base}")
    e(f"buffer_load_dword v{dst}, v{vreg}, {sr(srd,4)}, s{sT2} offen")
    e(f"s_cmp_lg_u32 s{sIDX}, 30")
    e(f"s_cbranch_scc1 L_touch{ntouch[0]}")
    e(f"s_add_u32 s{sT2}, s{sT2}, {1 << shift}")
    e(f"buffer_load_dword v{dst}, v{vreg}, {sr(srd,4)}, s{sT2} offen")
    lab(f"L_touch{ntouch[0]}")
def touch_addr1(v, t):
    e(f"v_lshrrev_b32 v{v}, 1, v{vL}")
    e(f"v_lshlrev_b32 v{v}, 10, v{v}")
    e(f"v_and_b32 v{t}, 1, v{vL}")
    e(f"v_lshl_add_u32 v{v}, v{t}, 7, v{v}")
nonly = [0]
class only_wave:
    def __init__(self, pr): self.pr = pr
    def __enter__(self):
        nonly[0] += 1; self.l = f"L_only{nonly[0]}"
        e(f"s_cmp_eq_u32 s{sPR}, {self.pr}"); e(f"s_cbranch_scc0 {self.l}")
    def __exit__(self, *a): lab(self.l)

def gen_main():
    global L
    main = L; L = []; gen_G1T0(); t0_code = L; L = main

    lab(f"{NAME}_kernel")
    e(f"s_cmp_ge_u32 s2, {NWG}")
    e("s_cbranch_scc1 L_exit")
    e(f"s_load_dwordx4 s[4:7], s[0:1], 0")
    e(f"s_load_dwordx4 s[12:15], s[0:1], 16")
    e(f"s_load_dwordx4 s[16:19], s[0:1], 32")
    e(f"s_load_dwordx2 s[24:25], s[0:1], 48")
    stamp(0)
    if P["stamps"]: e(f"s_memtime {sr(sST+32,2)}")
    e(f"v_lshrrev_b32 v8, 6, v0")
    e(f"v_and_b32 v{vL}, 63, v0")
    e(f"v_readfirstlane_b32 s{sW}, v8")
    e(f"s_lshr_b32 s{sIDX}, s2, 3")
    e(f"s_lshl_b32 s{sROW}, s2, 17")
    e(f"v_lshrrev_b32 v8, 4, v{vL}")
    e(f"s_lshr_b32 s{sGRP}, s{sW}, 2")
    e(f"s_and_b32 s{sPR}, s{sW}, 3")
    e(f"s_and_b32 s{sT0}, s{sPR}, 1")
    e(f"s_lshl_b32 s{sT1}, s{sT0}, 2")
    e(f"v_xor_b32 v{vX}, v8, v{vL}")
    e(f"v_xor_b32 v{vX}, s{sT1}, v{vX}")
    e(f"v_and_b32 v{vX}, 7, v{vX}")
    e(f"v_lshlrev_b32 v{vX}, 4, v{vX}")
    e(f"v_lshrrev_b32 v9, 3, v{vL}")
    e(f"v_lshl_add_u32 v{vX}, v9, 13, v{vX}")
    e(f"s_lshl_b32 s{sT0}, s{sT0}, 16")
    e(f"s_lshr_b32 s{sT1}, s{sPR}, 1")
    e(f"s_lshl_b32 s{sT1}, s{sT1}, 10")
    e(f"s_add_u32 s{sT0}, s{sT0}, s{sT1}")
    e(f"s_add_u32 s{sXG}, s{sT0}, s{sROW}")
    e(f"s_lshl_b32 s{sXL}, s{sPR}, 10")
    touch_addr1(15, 14)
    e(f"s_getpc_b64 {sr(sPC,2)}")
    lab("L_pc")
    e(f"s_lshl_b32 s{sT2}, s{sIDX}, 3")
    e(f"s_add_u32 s{sT2}, s{sT2}, s{sW}")
    e(f"s_lshl_b32 s{sT2}, s{sT2}, 8")
    e(f"s_min_u32 s{sT2}, s{sT2}, L_exit-L_pc-320")
    e(f"s_and_b32 s{sPC}, s{sPC}, 0xffffff80")
    e("s_waitcnt lgkmcnt(0)")
    e("s_mov_b32 s8, s6"); e("s_mov_b32 s9, s7")
    def srd(b, n):
        e(f"s_mov_b32 s{b+2}, {n}"); e(f"s_mov_b32 s{b+3}, 0x20000")
    srd(S_X, 32768000); srd(S_W1, 1048576)
    def late_setup():
        setup1(); setup2()
    def setup1():
        e(f"s_lshl_b32 s{sRB}, s{sPR}, 13")
        e(f"s_add_u32 s{sRB}, s{sRB}, 131072")
        e(f"s_lshl_b32 s{sCOL}, s{sW}, 6")
        e(f"v_bfe_u32 v9, v{vL}, 2, 2")
        e(f"v_lshl_add_u32 v{vW}, v8, 3, v9")
        e(f"v_lshlrev_b32 v{vW}, 11, v{vW}")
        e(f"v_lshlrev_b32 v9, 1, v8")
        e(f"v_xor_b32 v9, v9, v{vL}")
        e(f"v_and_b32 v9, 3, v9")
        e(f"v_lshl_add_u32 v{vW}, v9, 4, v{vW}")
    def setup2():
        g1_addr()
        e("s_mov_b32 s20, s12"); e("s_mov_b32 s21, s13")
        e("s_mov_b32 s12, s14"); e("s_mov_b32 s13, s15")
        e("s_mov_b32 s28, s18"); e("s_mov_b32 s29, s19")
        srd(S_W2, 524288); srd(S_OUT, 32768000); srd(S_DW, 5120)
        srd(S_WS, 0x800000 if P["stamps"] else 252*4096); srd(S_DBG, 256)
        e(f"s_mov_b32 s{sC}, 0xbfb8aa3b")
        e(f"s_mov_b32 s{sK}, 0xbf317218")
        e(f"s_mov_b32 s{sU}, s{sW}")
        for r, m in ((sE0, 0x00010001), (sE15, 0x80008000), (sEB, 0x80018001)):
            e(f"s_mov_b32 s{r}, {m:#x}"); e(f"s_mov_b32 s{r+1}, {m:#x}")
        e(f"s_cmp_ge_u32 s2, 125")
        e(f"s_cselect_b32 s{sT0}, 125, 0")
        e(f"s_sub_u32 s{sT0}, s2, s{sT0}")
        e(f"s_cmp_lg_u32 s{sT0}, 0")
        e(f"s_cselect_b32 s{sNB}, 1, 0")
        e(f"s_cselect_b32 s{sINL}, {64 if P['exch'] else OOB}, {OOB}")
        e(f"s_cmp_lg_u32 s{sT0}, 124")
        e(f"s_cselect_b32 s{sNB+1}, 1, 0")
        e(f"s_mov_b32 s{sT1}, {8192 if P['exch'] else OOB}")
        e(f"s_cselect_b32 s{sINR}, s{sT1}, {OOB}")
    def code_warm():
        cm("bring the code into L2: two lines per wave")
        if P["cpf"]:
            e(f"s_load_dwordx2 {sr(sDUM,2)}, {sr(sPC,2)}, s{sT2} offset:188")
            e(f"s_load_dwordx2 {sr(sDUM,2)}, {sr(sPC,2)}, s{sT2} offset:316")
    e(f"s_cmp_eq_u32 s{sGRP}, 0")
    e("s_cbranch_scc1 L_A")
    if P["bench"]: e("s_endpgm")
    VM.set([])
    code_warm()
    for u in range(4): x_dma(0, u)
    with only_wave(0): touch(S_W1, 15, 15, 0, 100)
    e("s_barrier")
    e("s_branch L_B")
    vm_b = list(VM.q)
    lab("L_A")
    code_warm()

    if P["bench"]:
        late_setup()
        e(f"s_lshl_b32 s{sT3}, s{sPR}, 8")
        touch(S_W1, 15, 15, f"s{sT3}", 10)
        stouch_base(2, 0)
        for i in range(20): stouch(2, i)
        for kc in range(8):
            for u in range(4): x_dma(kc, u)
        e("s_waitcnt vmcnt(0) lgkmcnt(0)")
        e("s_barrier")
        e("s_mov_b64 vcc, 0")
        for rep in range(3):
            VM.set([]); first_reads(1); takeover(1)
            stamp(1+2*rep); call("L_G1"); stamp(2+2*rep)
            e(f"s_add_u32 s{sCOL}, s{sCOL}, 256")
        w2_voff(vW, 8); e(f"s_lshl_b32 s{sCOL}, s{sW}, 7"); e(f"v_lshlrev_b32 v{vA0}, 4, v{vL}"); out_addr(sRB)
        VM.set([]); first_reads(2); takeover(2)
        stamp(9)
        e("s_branch L_G2")
    cm("group A")
    VM.set([])
    setup1()
    e("s_barrier")
    for s in range(8): w_dma(1, 0, s)
    setup2()
    takeover(1)
    e("s_mov_b64 vcc, 0")
    stamp(1)
    e("s_barrier")
    first_reads(1)
    stamp(2)
    L.extend(t0_code)
    stamp(3)
    stouch_base(1, 512)
    call("L_E1")
    stamp(6)
    stouch_base(2, 0)
    w2_voff(vW, vA0)
    e(f"v_lshlrev_b32 v{vA0}, 4, v{vL}")
    gen_E2A()
    e("s_mov_b64 vcc, -1")
    stamp(9)
    e("s_branch L_G2")

    lab("L_B")
    VM.set(vm_b)
    late_setup()
    for kc in range(1, P["p0"]):
        for u in range(4): x_dma(kc, u)
    if P["exch"]:
        cm("mark this workgroup's outbound hand-off slots as empty (1 KB per wave)")
        for r in range(8, 12): e(f"v_mov_b32 v{r}, -1")
        e(f"v_lshlrev_b32 v12, 4, v{vL}")
        e(f"s_lshl_b32 s{sT0}, s2, 12")
        e(f"s_add_u32 s{sT0}, s{sT0}, s{sXL}")
        e(f"s_add_u32 s{sT0}, s{sT0}, 4096")
        e(f"buffer_store_dwordx4 v[8:11], v12, {sr(S_WS,4)}, s{sT0} offen sc1"); VM.push("clr")
        e(f"v_lshrrev_b32 v18, 4, v{vL}")
        e(f"s_sub_u32 s{sT3}, s2, 1")
        e(f"v_add_u32 v18, s{sT3}, v18")
    stouch_base(1, 256)
    bars = [0] + T0["bars"]
    assert len(bars) >= 5
    for i, kc in enumerate(bars):
        VM.wait(("x", kc))
        if i == 1: VM.wait("clr")
        if i == 0: stamp(1)
        if i == len(bars)-1 and P["exch"]:
            with only_wave(0):
                e("s_waitcnt vmcnt(0)")
                e(f"s_mov_b64 exec, {sr(sNB,2)}")
                e(f"s_mov_b32 s{sSPIN}, 0x8000")
                lab("L_fpoll")
                e(f"v_cmp_ne_u32 vcc, 0, v22")
                e("s_nop 1")
                e("s_cmp_eq_u64 vcc, exec")
                e("s_cbranch_scc0 L_frepoll")
                lab("L_fpolled")
                e("s_mov_b64 exec, -1")
            outl.append(f"""L_frepoll:
    s_sub_u32 s{sSPIN}, s{sSPIN}, 1
    s_cbranch_scc1 L_fpolled
    buffer_load_ubyte v22, v18, {sr(S_DBG,4)}, 0 offen sc1
    s_waitcnt vmcnt(0)
    s_branch L_fpoll""")
        e("s_barrier")
        if i == len(bars)-1: stamp(2)
        if i == 1 and P["exch"]:
            with only_wave(0):
                e(f"s_and_b32 s{sAT}, s2, 3")
                e(f"s_lshl_b32 s{sAT}, s{sAT}, 3")
                e(f"s_lshl_b32 s{sAT}, 1, s{sAT}")
                e(f"s_and_b32 s{sAT+1}, s2, 0xfc")
                e(f"s_atomic_or s{sAT}, {sr(S_DBG,2)}, s{sAT+1}")
        if i < 4:
            for k in range(5): stouch(1, 5*i+k)
        if i == 4:
            e(f"s_lshl_b32 s{sT2}, s{sIDX}, 2")
            e(f"s_add_u32 s{sT2}, s{sT2}, s{sPR}")
            e(f"s_lshl_b32 s{sT2}, s{sT2}, 7")
            e(f"s_buffer_load_dwordx2 {sr(sDUM,2)}, {sr(S_DW,4)}, s{sT2} offset:60")
            if P["otlb"]: e(f"s_buffer_load_dword s{sDUM}, {sr(S_OUT,4)}, s{sROW}")
        if i == len(bars)-2 and P["exch"]:
            with only_wave(0):
                e(f"s_mov_b64 exec, {sr(sNB,2)}")
                e(f"buffer_load_ubyte v22, v18, {sr(S_DBG,4)}, 0 offen sc1")
                e("s_mov_b64 exec, -1")
    w2_voff(vX, 8)
    e(f"s_lshl_b32 s{sT3}, s{sPR}, 7")
    e("s_mov_b64 vcc, 0")
    e("s_waitcnt vmcnt(0) lgkmcnt(0)")
    first_reads(1)
    e("s_barrier")
    VM.set([])
    takeover(1)
    stamp(3)
    call("L_G1")
    stamp(4)
    stouch_base(1, 768)
    call("L_E1")
    stamp(7)
    stouch_base(2, 512)
    gen_E2B()
    e("s_waitcnt lgkmcnt(0)")
    stamp(8)
    e("s_barrier")
    e(f"v_mov_b32 v{vW}, v{vX}")
    e(f"s_lshl_b32 s{sCOL}, s{sW}, 7")
    e(f"v_lshlrev_b32 v{vA0}, 4, v{vL}")
    out_addr(sRB)
    e("s_mov_b64 vcc, 0")
    first_reads(2)
    e("s_barrier")
    VM.set([])
    takeover(2)
    stamp(9)
    gen_G2()
    gen_E1()
    gen_G1()
    for o in outl: L.append(o)
    lab("L_exit")
    e("s_endpgm")

HEAD = f"""; Fused conformer conv module: GEMM1 + GLU + depthwise conv + SiLU + GEMM2, one 128-row tile per workgroup.
; Kernarg: x, w_pw1, dw, w_pw2, out, debug, ws
; @launch grid=({NWG},1,1) block=(512,1,1) lds=163840
.amdgcn_target "amdgcn-amd-amdhsa--gfx950"
.text
.globl {NAME}_kernel
.p2align 8
.type {NAME}_kernel,@function
"""
TAIL = f"""
.section .rodata,"a"
.p2align 6
.amdhsa_kernel {NAME}_kernel
  .amdhsa_next_free_vgpr 256
  .amdhsa_next_free_sgpr 102
  .amdhsa_accum_offset 256
  .amdhsa_group_segment_fixed_size 0
  .amdhsa_kernarg_size 56
  .amdhsa_user_sgpr_count 2
  .amdhsa_user_sgpr_kernarg_segment_ptr 1
  .amdhsa_system_sgpr_workgroup_id_x 1
.end_amdhsa_kernel
"""
gen_main()
txt = HEAD + "\n".join(L) + TAIL
if out_path is None: out_path = f"cdna_kernels/{NAME}.s"
open(out_path, "w").write(txt)
```

```python
import sys, io, contextlib
with contextlib.redirect_stdout(io.StringIO()):
    from gen_mem import *
files.clear()
def body(depth, seg, xthr, xseg=128, prioB=0, rot=0, xfl='nt'):
    o = ["    s_mov_b32 s48, 0"]
    o.append("    s_lshr_b32 s21, s2, 3")
    o.append("    s_lshl_b32 s21, s21, 15")
    o.append("    s_lshl_b32 s22, s20, 12")
    o.append("    s_add_u32 s21, s21, s22")
    o.append("    v_lshlrev_b32 v3, 6, v2")
    o.append("    buffer_load_dword v20, v3, s[16:19], s21 offen")
    o.append("    s_waitcnt vmcnt(0)")
    o.append("""
    s_add_u32 s50, s40, 300
L_spin:
    s_memrealtime s[52:53]
    s_waitcnt lgkmcnt(0)
    s_sub_u32 s54, s52, s50
    s_cmp_lt_i32 s54, 0
    s_cbranch_scc1 L_spin
""")
    o.append("    s_cmp_lt_u32 s20, 4")
    o.append("    s_cbranch_scc1 L_w")
    o.append(f"    s_setprio {prioB}")
    if xthr:
        if xseg == 128:
            o.append("    v_lshrrev_b32 v3, 3, v2"); o.append("    v_and_b32 v4, 7, v2")
            go = lambda kc,q: kc*128 + q*8192
        elif xseg == 256:
            o.append("    v_lshrrev_b32 v3, 4, v2"); o.append("    v_and_b32 v4, 15, v2")
            go = lambda kc,q: (kc//2)*256 + ((kc%2)*4+q)*4096
        elif xseg == 8:
            o.append("    v_lshrrev_b32 v3, 3, v2"); o.append("    v_and_b32 v4, 7, v2"); o.append("    v_lshlrev_b32 v3, 3, v3")
            go = lambda kc,q: kc*128 + q*2048
        elif xseg == 512:
            o.append("    v_lshrrev_b32 v3, 5, v2"); o.append("    v_and_b32 v4, 31, v2")
            go = lambda kc,q: (kc//4)*512 + ((kc%4)*4+q)*2048
        else:
            o.append("    v_mov_b32 v3, 0"); o.append("    v_mov_b32 v4, v2")
            go = lambda kc,q: (kc*4+q)*1024
        o.append("    v_lshlrev_b32 v3, 10, v3")
        o.append("    v_lshl_add_u32 v3, v4, 4, v3")
        o.append("    s_lshl_b32 s21, s2, 17")
        o.append("    s_sub_u32 s22, s20, 4")
        o.append("    s_lshl_b32 s22, s22, 15")
        if xseg == 8:
            o.append("    s_and_b32 s55, s20, 1"); o.append("    s_lshl_b32 s55, s55, 16"); o.append("    s_add_u32 s21, s21, s55")
            o.append("    s_and_b32 s55, s20, 2"); o.append("    s_lshl_b32 s55, s55, 9"); o.append("    s_add_u32 s21, s21, s55")
        else:
            o.append("    s_add_u32 s21, s21, s22")
        done = 0
        for i in range(32+xthr-1):
            if i < 32:
                kc, q = i//4, i%4
                if rot:
                    o.append(f"    s_lshr_b32 s55, s2, {rot-1}")
                    o.append(f"    s_add_u32 s55, s55, {kc}")
                    o.append(f"    s_and_b32 s55, s55, 7")
                    o.append(f"    s_lshl_b32 s55, s55, 7")
                    o.append(f"    s_add_u32 s55, s55, {q*8192}")
                    o.append(f"    s_add_u32 s23, s21, s55")
                else:
                    o.append(f"    s_add_u32 s23, s21, {go(kc,q)}")
                o.append(f"    s_add_u32 m0, s22, {i*1024}")
                o.append(f"    s_nop 0")
                o.append(f"    buffer_load_dwordx4 v3, s[12:15], s23 offen {xfl} lds")
            if i >= xthr-1:
                o.append(f"    s_waitcnt vmcnt({min(xthr-1, 31-(i-xthr+1))})")
                done += 1
                if done % 4 == 0: o.append(f"    s_memrealtime s[{60+2*(done//4-1)}:{61+2*(done//4-1)}]")
    else:
        for kc in range(8): o.append(f"    s_memrealtime s[{60+2*kc}:{61+2*kc}]")
    o.append("    s_branch L_out")
    o.append("L_w:")
    if depth:
        if seg == 64:
            o.append("    v_lshrrev_b32 v3, 2, v2"); o.append("    v_and_b32 v4, 3, v2"); o.append("    s_lshl_b32 s22, s20, 6")
            go = lambda i: (i//2)*32768 + (i%2)*1024
        else:
            o.append("    v_lshrrev_b32 v3, 3, v2"); o.append("    v_and_b32 v4, 7, v2"); o.append("    s_lshl_b32 s22, s20, 7")
            go = lambda i: i*16384
        o.append("    v_lshlrev_b32 v3, 11, v3")
        o.append("    v_lshl_add_u32 v3, v4, 4, v3")
        o.append("    s_lshl_b32 s37, s20, 13")
        o.append("    s_add_u32 m0, s37, 131072")
        done = 0
        for i in range(64+depth-1):
            if i < 64:
                o.append(f"    s_add_u32 s23, s22, {go(i)}")
                o.append(f"    buffer_load_dwordx4 v3, s[16:19], s23 offen lds")
            if i >= depth-1:
                o.append(f"    s_waitcnt vmcnt({min(depth-1, 63-(i-depth+1))})")
                done += 1
                if done % 8 == 0: o.append(f"    s_memrealtime s[{60+2*(done//8-1)}:{61+2*(done//8-1)}]")
    else:
        for kc in range(8): o.append(f"    s_memrealtime s[{60+2*kc}:{61+2*kc}]")
    o.append("L_out:")
    o.append("    s_waitcnt lgkmcnt(0)")
    for i in range(8):
        o.append(f"    v_mov_b32 v{24+i}, s{60+2*i}")
    o.append("    s_lshl_b32 s26, s2, 3")
    o.append("    s_add_u32 s26, s26, s20")
    o.append("    s_lshl_b32 s26, s26, 5")
    o.append("    s_add_u32 s26, s26, 65536")
    o.append("    v_mov_b32 v6, s26")
    o.append("    buffer_store_dwordx4 v[24:27], v6, s[8:11], 0 offen")
    o.append("    buffer_store_dwordx4 v[28:31], v6, s[8:11], 0 offen offset:16")
    return "\n".join(o) + "\n"
for rep in range(2):
  for xs in [128,8]:
    emit(f"k{rep}_s64_d8_t4_x{xs}", body(8, 64, 4, xs, prioB=1))
    emit(f"k{rep}_xonly_t2_x{xs}", body(0, 64, 2, xs))
print(" ".join(files))
```
